```python
import torch

def _softmax(x, axis=-1):
    return torch.softmax(x, dim=axis)
def _gelu(x):
    return torch.nn.functional.gelu(x, approximate="tanh")
def _silu(x):
    return torch.nn.functional.silu(x)
def _sigmoid(x):
    return torch.sigmoid(x)
def _layernorm(x, axis=-1, eps=1e-5):
    m = x.mean(dim=axis, keepdim=True)
    v = x.var(dim=axis, keepdim=True, unbiased=False)
    return (x - m) / torch.sqrt(v + eps)
def _scatter_add(tgt, idx, src, axis=0):
    return tgt.clone().index_add_(axis, idx, src)
def _segment_sum(src, seg, n):
    out = torch.zeros((n,) + src.shape[1:], dtype=src.dtype)
    return out.index_add_(0, seg, src)
def _pad(x, pw):
    flat = tuple(v for pair in reversed(pw) for v in pair)
    return torch.nn.functional.pad(x, flat)

kernel_name = 'interleave_layers__ssm_conv_h3__linear_attn_block__prompt'

def setup_inputs():

    _w = (lambda a: (lambda t: t.to(torch.bfloat16) if t.is_floating_point() else t)(torch.as_tensor(a)))
    def _A_setup():
        B, S, D = 1, 2048, 512
        ks = 4
        return {
            "q": _w((lambda *s: torch.randn(*s, dtype=torch.bfloat16) * 0.05)(B, S, D)),
            "k": _w((lambda *s: torch.randn(*s, dtype=torch.bfloat16) * 0.4)(B, S, D)),
            "v": _w((lambda *s: torch.randn(*s, dtype=torch.bfloat16) * 0.4)(B, S, D)),
            "shift_k": _w((lambda *s: torch.randn(*s, dtype=torch.bfloat16) * 0.4)(D, ks) * 0.5),
            "ssm_k": _w((lambda *s: torch.randn(*s, dtype=torch.bfloat16) * 0.4)(D, S) * (1.0 / S ** 0.5)),
            "ssm_D": _w((lambda *s: torch.randn(*s, dtype=torch.bfloat16) * 0.4)(D)),
        }
    _A_in = _A_setup()

    def _B_setup():
        B, S, D = 1, 2048, 512
        return {
            "x": _w((lambda *s: torch.randn(*s, dtype=torch.bfloat16) * 0.05)(B, S, D)),
            "wqkv": _w((lambda *s: torch.randn(*s, dtype=torch.bfloat16) * 0.1)(D, 3 * D)),
            "wo": _w((lambda *s: torch.randn(*s, dtype=torch.bfloat16) * 0.05)(D, D)),
        }
    _B_in = _B_setup()

    return {
        "A_q": _A_in["q"],
        "A_k": _A_in["k"],
        "A_v": _A_in["v"],
        "A_shift_k": _A_in["shift_k"],
        "A_ssm_k": _A_in["ssm_k"],
        "A_ssm_D": _A_in["ssm_D"],
        "B_x": _B_in["x"],
        "B_wqkv": _B_in["wqkv"],
        "B_wo": _B_in["wo"],
    }

def reference(A_q, A_k, A_v, A_shift_k, A_ssm_k, A_ssm_D, B_x, B_wqkv, B_wo):
    def _A_ref(q, k, v, shift_k, ssm_k, ssm_D):
        B, S, D = q.shape
        ks = shift_k.shape[-1]
        k_pad = _pad(k, ((0, 0), (ks - 1, 0), (0, 0)))
        k_shift = torch.zeros_like(k)
        for t in range(ks):
            k_shift = k_shift + k_pad[:, t:t + S, :] * shift_k[:, ks - 1 - t][None, None, :]
        kv = k_shift * v
        L = 2 * S
        kv_pad = _pad(kv, ((0, 0), (0, S), (0, 0)))
        kf_pad = _pad(ssm_k, ((0, 0), (0, S)))
        kv_f = (lambda x, axes=(-2,-1): torch.fft.rfft2(x.float(), dim=axes))(kv_pad[:, None, :, :], axes=(1, 2))
        kf_f = (lambda x, axes=(-2,-1): torch.fft.rfft2(x.float(), dim=axes))(kf_pad[:, None, :], axes=(1, 2))
        kf_f = (lambda x, *d: x.permute(*d))(kf_f, 1, 2, 0)
        y_f = kv_f * kf_f[None, :, :, :]
        y = (lambda x, s, axes=(-2,-1): torch.fft.irfft2(x, s=s, dim=axes).to(torch.bfloat16))(y_f, (1, L), axes=(1, 2))[:, 0, :S, :]
        y = y + kv * ssm_D[None, None, :]
        return q * y

    def _B_ref(x, wqkv, wo):
        B, S, D = x.shape
        H = 32; Dh = D // H
        qkv = (lambda x, *d: x.permute(*d))((x @ wqkv).reshape(B, S, 3, H, Dh), 2, 0, 3, 1, 4)
        q, k, v = qkv[0], qkv[1], qkv[2]
        phi = lambda t: torch.where(t > 0, t + 1, torch.exp(t)) + 1e-6
        pq, pk = phi(q), phi(k)
        kv = torch.einsum("bhsd,bhse->bhde", pk, v)
        z = torch.einsum("bhsd->bhd", pk)
        num = torch.einsum("bhqd,bhde->bhqe", pq, kv)
        den = torch.einsum("bhqd,bhd->bhq", pq, z)[..., None] + 1e-6
        o = num / den
        return (lambda x, *d: x.permute(*d))(o, 0, 2, 1, 3).reshape(B, S, D) @ wo

    x = A_q
    x = x + _A_ref(_layernorm(x, axis=-1), A_k, A_v, A_shift_k, A_ssm_k, A_ssm_D)
    x = x + _B_ref(_layernorm(x, axis=-1), B_wqkv, B_wo)
    x = x + _A_ref(_layernorm(x, axis=-1), A_k, A_v, A_shift_k, A_ssm_k, A_ssm_D)
    x = x + _B_ref(_layernorm(x, axis=-1), B_wqkv, B_wo)
    return x
```

```python
import re

_REG = re.compile(r'^(-|abs\(|\|)?([vas])(\d+|\[(\d+):(\d+)\])\)?\|?$')
TRANS = ('v_exp_f32', 'v_log_f32', 'v_rcp_f32', 'v_rsq_f32', 'v_sqrt_f32', 'v_sin_f32', 'v_cos_f32')


def regs_of(tok):
    tok = tok.strip()
    if tok == 'vcc':
        return [('s', 106), ('s', 107)]
    if tok == 'vcc_lo':
        return [('s', 106)]
    if tok == 'vcc_hi':
        return [('s', 107)]
    if tok == 'exec':
        return [('s', 126), ('s', 127)]
    if tok == 'exec_lo':
        return [('s', 126)]
    if tok == 'exec_hi':
        return [('s', 127)]
    if tok == 'm0':
        return [('s', 124)]
    m = _REG.match(tok)
    if not m:
        return []
    f = m.group(2)
    if m.group(4) is not None:
        return [(f, i) for i in range(int(m.group(4)), int(m.group(5)) + 1)]
    return [(f, int(m.group(3)))]


def split_ops(s):
    out, depth, cur = [], 0, ''
    for ch in s:
        if ch in '[(':
            depth += 1
        if ch in '])':
            depth -= 1
        if ch == ',' and depth == 0:
            out.append(cur.strip())
            cur = ''
        else:
            cur += ch
    if cur.strip():
        out.append(cur.strip())
    return out


class Ins:
    __slots__ = ('text', 'mn', 'defs', 'uses', 'kind', 'mods', 'srcA', 'srcB', 'srcC', 'data', 'wide')

    def __init__(self, text):
        self.text = text
        parts = text.split(None, 1)
        mn = parts[0]
        self.mn = mn
        rest = parts[1] if len(parts) > 1 else ''
        ops = split_ops(rest)
        mods = ''
        if ops:
            last = ops[-1]
            depth = 0
            for i, ch in enumerate(last):
                if ch in '[(':
                    depth += 1
                elif ch in '])':
                    depth -= 1
                elif ch == ' ' and depth == 0:
                    mods = last[i + 1:]
                    ops[-1] = last[:i]
                    break
        self.mods = mods
        R = [regs_of(o) for o in ops]
        flat = lambda l: [x for r in l for x in r]
        self.srcA = self.srcB = self.srcC = []
        self.data = []
        self.wide = False
        defs, uses = [], []
        if mn.startswith('v_mfma'):
            kind = 'mfma'
            defs = R[0]
            self.srcA, self.srcB, self.srcC = R[1], R[2], R[3]
            uses = flat(R[1:])
        elif mn.startswith('v_'):
            kind = 'valu'
            if mn.startswith('v_cmp'):
                defs, uses = R[0], flat(R[1:])
            elif mn.startswith('v_permlane') or mn.startswith('v_swap'):
                defs, uses = flat(R[:2]), flat(R[:2])
            elif re.match(r'v_(add|sub|subrev|addc|subb)_co', mn):
                defs, uses = flat(R[:2]), flat(R[2:])
            elif mn.startswith('v_fmac') or mn.startswith('v_dot2c') or mn.startswith('v_writelane'):
                defs, uses = R[0], flat(R)
            elif mn == 'v_nop':
                pass
            else:
                defs, uses = R[0], flat(R[1:])
                if 'row_' in mods or 'quad_perm' in mods:
                    uses = uses + R[0]
        elif mn.startswith('buffer_') or mn.startswith('global_'):
            kind = 'vmem'
            toks = mods.split()
            if mn.startswith('buffer_wbl2') or mn.startswith('buffer_inv'):
                pass
            elif 'lds' in toks or '_lds_' in mn:
                uses = flat(R) + [('s', 124)]
            elif '_load' in mn:
                defs, uses = R[0], flat(R[1:])
            elif '_store' in mn:
                uses = flat(R)
                self.data = R[0] if mn.startswith('buffer_') else R[1]
                self.wide = len(self.data) >= 3
            elif '_atomic' in mn:
                uses = flat(R)
                if 'sc0' in toks:
                    defs = R[0]
            else:
                raise ValueError(text)
        elif mn.startswith('ds_'):
            kind = 'ds'
            if 'read' in mn or 'permute' in mn or 'swizzle' in mn:
                defs, uses = R[0], flat(R[1:])
            else:
                uses = flat(R)
        elif mn.startswith('s_load') or mn.startswith('s_memtime') or mn.startswith('s_memrealtime'):
            kind = 'smem'
            defs, uses = R[0], flat(R[1:])
        elif mn.startswith('s_'):
            kind = 'salu'
            if mn.startswith('s_cmp') or mn.startswith('s_bitcmp') or mn in ('s_waitcnt', 's_barrier', 's_nop', 's_endpgm', 's_setprio') \
                    or mn.startswith('s_cbranch') or mn == 's_branch':
                uses = flat(R)
            elif 'saveexec' in mn:
                defs, uses = R[0] + regs_of('exec'), flat(R[1:]) + regs_of('exec')
            else:
                defs, uses = (R[0] if R else []), flat(R[1:])
                if mn in ('s_addk_i32', 's_mulk_i32'):
                    uses = uses + R[0]
        else:
            raise ValueError('unknown instruction: ' + text)
        self.kind, self.defs, self.uses = kind, set(defs), set(uses)


def need_states(p, c):
    n = 0
    pv = {r for r in p.defs if r[0] in 'va'}
    ps = {r for r in p.defs if r[0] == 's'}
    if p.kind == 'valu':
        isdot = p.mn.startswith('v_dot')
        if c.kind == 'mfma' and pv & c.uses:
            n = max(n, 3 if isdot else 2)
        if c.kind == 'valu':
            if pv & c.uses:
                if c.mn.startswith('v_permlane') or 'row_' in c.mods or 'quad_perm' in c.mods:
                    n = max(n, 2)
                if c.mn.startswith('v_readlane') or c.mn.startswith('v_readfirstlane'):
                    n = max(n, 1)
                if p.mn.split('_e')[0] in TRANS or p.mn in TRANS:
                    n = max(n, 1)
            if isdot and pv & (c.uses | c.defs):
                same = c.mn == p.mn
                if same:
                    ops = split_ops(c.text.split(None, 1)[1])
                    ab = set(regs_of(ops[1]) + regs_of(ops[2]))
                    if pv & ab:
                        n = max(n, 3)
                else:
                    n = max(n, 3)
            if ps & c.uses:
                if c.mn.startswith('v_readlane') or c.mn.startswith('v_writelane'):
                    n = max(n, 4)
                n = max(n, 2)
        if isdot and c.kind in ('vmem', 'ds') and pv & c.uses:
            n = max(n, 3)
        if c.kind == 'vmem' and ps & c.uses:
            n = max(n, 5)
        if c.kind in ('salu', 'smem') and ps & c.uses:
            n = max(n, 1)
    elif p.kind == 'mfma':
        big = '32x32' in p.mn
        if c.kind == 'mfma':
            if pv & (set(c.srcA) | set(c.srcB)):
                n = max(n, 12 if big else 8)
            if pv & set(c.srcC):
                if not (set(c.srcC) == pv and c.mn == p.mn):
                    n = max(n, 10 if big else 6)
            elif pv & c.defs:
                n = max(n, 10 if big else 6)
        elif c.kind in ('valu', 'vmem', 'ds'):
            if pv & (c.uses | c.defs):
                n = max(n, 12 if big else 8)
            if c.kind == 'valu' and set(p.srcC) & c.defs:
                n = max(n, 7 if big else 3)
    elif p.kind == 'salu':
        if ('s', 124) in p.defs and c.kind == 'vmem' and ('s', 124) in c.uses:
            n = max(n, 1)
    elif p.kind == 'vmem':
        if p.wide and set(p.data) & c.defs:
            n = max(n, 2)
    return n


class Gen:
    def __init__(self):
        self.out = []
        self.hist = []
        self.saved = {}
        self.vmq = []
        self.lgq = []
        self.smem = set()
        self.smem_any = False
        self.nid = 0
        self.uncounted = False
        self.nnops = 0
        self.nwaits = 0
        self.vm_dirty = False
        self.lg_dirty = False

    def raw(self, text):
        self.out.append(text)

    def comment(self, t):
        self.out.append('    ; ' + t)

    def _age(self, k):
        self.hist = [(i, a + k) for (i, a) in self.hist if a + k < 24]

    def _emit(self, ins):
        need = 0
        for (p, a) in self.hist:
            n = need_states(p, ins) - a
            if n > need:
                need = n
        while need > 0:
            k = min(need, 16)
            self.out.append('    s_nop %d' % (k - 1))
            self.nnops += 1
            self._age(k)
            need -= k
        self.out.append('    ' + ins.text)
        k = 1
        if ins.mn == 's_nop':
            k = int(ins.text.split()[1]) + 1
        self._age(k)
        self.hist.append((ins, 0))

    def _wait(self, vm=None, lg=None):
        parts = []
        if vm is not None:
            vm = min(vm, 63)
            if vm < len(self.vmq) or (vm == 0 and self.vm_dirty):
                parts.append('vmcnt(%d)' % vm)
                self.vmq = self.vmq[len(self.vmq) - vm:] if vm else []
                if vm == 0:
                    self.vm_dirty = False
        if lg is not None:
            if self.smem_any:
                lg = 0
            lg = min(lg, 15)
            if lg < len(self.lgq) or self.smem_any or (lg == 0 and self.lg_dirty):
                parts.append('lgkmcnt(%d)' % lg)
                self.lgq = self.lgq[len(self.lgq) - lg:] if lg else []
                if lg == 0:
                    self.lg_dirty = False
                self.smem = set()
                self.smem_any = False
        if parts:
            self.nwaits += 1
            self._emit(Ins('s_waitcnt ' + ' '.join(parts)))

    def I(self, text):
        ins = Ins(text)
        touch = ins.defs | ins.uses
        vm = lg = None
        for k, op in enumerate(self.vmq):
            if op['regs'] & touch:
                vm = len(self.vmq) - 1 - k
        for k, op in enumerate(self.lgq):
            if op['regs'] & touch:
                lg = len(self.lgq) - 1 - k
        if self.smem & touch:
            lg = 0
        if vm is not None or lg is not None:
            self._wait(vm, lg)
        if ins.mn == 's_waitcnt':
            raise ValueError('use wait helpers')
        self._emit(ins)
        if ins.kind == 'vmem':
            self.nid += 1
            if self.uncounted:
                assert not ins.defs or True
                self.vmq_unc.append({'id': self.nid, 'regs': set(ins.defs)})
            self.vmq.append({'id': self.nid, 'regs': set(ins.defs)})
            return self.nid
        if ins.kind == 'ds':
            self.nid += 1
            self.lgq.append({'id': self.nid, 'regs': set(ins.defs)})
            return self.nid
        if ins.kind == 'smem':
            self.smem |= ins.defs
            self.smem_any = True
        return None

    def L(self, text):
        for line in text.strip().split('\n'):
            line = line.split(';')[0].strip()
            if line:
                self.I(line)

    def wait_vm(self, op=None):
        if op is None:
            self._wait(vm=0)
            return
        for k, o in enumerate(self.vmq):
            if o['id'] == op:
                self._wait(vm=len(self.vmq) - 1 - k)
                return

    def wait_lg(self, op=None):
        if op is None:
            self._wait(lg=0)
            return
        for k, o in enumerate(self.lgq):
            if o['id'] == op:
                self._wait(lg=len(self.lgq) - 1 - k)
                return

    def force_wait(self, vm=None, lg=None):
        parts = []
        if vm is not None:
            assert vm == 0
            parts.append('vmcnt(0)')
            self.vmq = []
            self.vm_dirty = False
        if lg is not None:
            assert lg == 0
            parts.append('lgkmcnt(0)')
            self.lgq = []
            self.lg_dirty = False
            self.smem = set()
            self.smem_any = False
        self._emit(Ins('s_waitcnt ' + ' '.join(parts)))

    def barrier(self):
        self._wait(lg=0)
        self._emit(Ins('s_barrier'))

    def branch(self, text):
        ins = Ins(text)
        self._emit(ins)
        lab = text.split()[-1]
        self.saved.setdefault(lab, []).append(list(self.hist))

    def label(self, name):
        for h in self.saved.pop(name, []):
            self.hist = self.hist + h
        self.out.append(name + ':')

    def cond_begin(self):
        self.uncounted = True
        self.vmq_unc = []
        self._pre_vmq = list(self.vmq)
        self._pre_lgq = list(self.lgq)
        self._pre_smem = set(self.smem)
        self._pre_smem_any = self.smem_any
        self._pre_dirty = (self.vm_dirty, self.lg_dirty)

    def cond_end(self):
        ids = {o['id'] for o in self.vmq_unc}
        for o in self.vmq:
            if o['id'] in ids:
                assert not o['regs'], 'unwaited load at end of conditional region'
        pre_ids = {o['id'] for o in self._pre_lgq}
        for o in self.lgq:
            if o['id'] not in pre_ids:
                assert not o['regs'], 'unwaited lds read at end of conditional region'
        if any(o['id'] in ids for o in self.vmq):
            self.vm_dirty = True
        self.vmq = list(self._pre_vmq)
        if any(o['id'] not in pre_ids for o in self.lgq):
            self.lg_dirty = True
        self.lgq = list(self._pre_lgq)
        self.smem = set(self._pre_smem)
        self.smem_any = self._pre_smem_any
        self.vm_dirty = self.vm_dirty or self._pre_dirty[0]
        self.lg_dirty = self.lg_dirty or self._pre_dirty[1]
        self.uncounted = False

    def text(self):
        return '\n'.join(self.out) + '\n'


def weave(g, mf, fill, per=2, lead=0):
    fi = 0
    for _ in range(lead):
        if fi < len(fill):
            g.I(fill[fi]); fi += 1
    for m in mf:
        if isinstance(m, tuple):
            g.I(m[0])
            extra = m[1]
            for e in extra:
                g.I(e)
            n = max(0, per - len(extra))
        else:
            g.I(m)
            n = per
        for _ in range(n):
            if fi < len(fill):
                g.I(fill[fi]); fi += 1
    while fi < len(fill):
        g.I(fill[fi]); fi += 1
```

```python
import sys
from asmgen import Gen, weave

NAME = 'interleave_layers__ssm_conv_h3__linear_attn_block__prompt_kernel'

WS_NONCE = 0x0
WS_FL = 0x1000
FG_OFF = 0x8000
WS_F2 = 0x20000
WS_F4 = 0x30000
WS_KVP = 0x40000
KVP_SZ = 1280
WS_ST = 0x100000
WS_Y = 0x200000
WS_U = 0x400000
WS_X = 0x600000
WS_O = 0xA00000
WS_STAMP = 0xE00000
WS_SIZE = 0x1000000
FK_H1, FK_S, FK_X, FK_O = 0, 1, 3, 5

L_H = 0
HCOPY = 4160
HCH = 4 * HCOPY
L_U = 33280
UCH = 4608
L_SCR = 42496
L_RED = 65536
L_WKV = 98304
L_WQ = 0
L_WO = [32768, 65536, 98304, 131072]
L_TAB = 131072
L_KVS = 131072 + 2048
LDS_BYTES = 163840

WS, SK, SV, SQ, SSH, SH, SW, SWO, SOUT = ['s[%d:%d]' % (4 * i + 4, 4 * i + 7) for i in range(9)]
sX, sR, sW, sNL, sN, sMODE, sRB, sCB, sRG, sHP, sCP, sD0, sD1, sCNT = ['s%d' % i for i in range(44, 58)]
sT0, sT1, sT2, sT3 = 's58', 's59', 's60', 's61'
sM2 = 's[62:63]'
sSELLO, sSELHI, sHI16 = 's88', 's89', 's90'
sC1, sEPS6, sINV512, sEPS5, sLOG2E, sE0, sE1 = 's91', 's92', 's93', 's94', 's95', 's96', 's97'

vL, vL16, vL0, vXA, vNL, vN = 'v0', 'v1', 'v2', 'v3', 'v98', 'v99'
vSTAMP = 'v7'
CSQ, CSK, CSV, ONES, YPK, XR = 88, 96, 97, 100, 104, 112
WO0 = 128


def v(i, n=1):
    return 'v%d' % i if n == 1 else 'v[%d:%d]' % (i, i + n - 1)


def a(i, n=1):
    return 'a%d' % i if n == 1 else 'a[%d:%d]' % (i, i + n - 1)


def mf32(d, x, y, c=None):
    return 'v_mfma_f32_16x16x32_bf16 %s, %s, %s, %s' % (d, x, y, d if c is None else c)


def mf16(d, x, y, c=None):
    return 'v_mfma_f32_16x16x16_bf16 %s, %s, %s, %s' % (d, x, y, d if c is None else c)


class K:
    def __init__(self, stamps=False, opts=None):
        self.g = Gen()
        self.stamps = stamps
        self.nst = 0
        self.stnames = []
        self.nlab = 0
        self.o = dict(force_slow=False, h1_timeout=600, spin_max=400000)
        self.o.update(opts or {})

    def lab(self, p):
        self.nlab += 1
        return 'L_%s%d' % (p, self.nlab)

    def stamp(self, name):
        if not self.stamps:
            return
        g = self.g
        g.I('s_memtime s[98:99]')
        g.I('v_writelane_b32 %s, s98, %d' % (vSTAMP, self.nst))
        self.stnames.append(name)
        self.nst += 1

    def publish_local(self, last_store, s_addr):
        g = self.g
        g.wait_vm(last_store)
        skip = self.lab('pf')
        g.I('s_cmp_eq_u32 %s, 0' % sMODE)
        g.branch('s_cbranch_scc1 ' + skip)
        g.cond_begin()
        g.I('buffer_wbl2 sc1')
        g.force_wait(vm=0)
        g.I('s_add_u32 %s, %s, %d' % (sT3, s_addr, FG_OFF))
        g.I('buffer_store_dword %s, %s, %s, %s offen sc1' % (vN, vL0, WS, sT3))
        g.force_wait(vm=0)
        g.cond_end()
        g.label(skip)
        g.I('buffer_store_dword %s, %s, %s, %s offen' % (vNL, vL0, WS, s_addr))

    def publish_global(self, last_store, s_addr):
        g = self.g
        g.wait_vm(last_store)
        g.I('buffer_store_dword %s, %s, %s, %s offen sc1' % (vN, vL0, WS, s_addr))

    def poll_global(self, v_addr, s_off, vt):
        g = self.g
        top, done = self.lab('pg'), self.lab('pd')
        g.I('s_mov_b32 %s, 0' % sCNT)
        g.label(top)
        g.I('buffer_load_dword %s, %s, %s, %s offen sc1' % (v(vt), v_addr, WS, s_off))
        g.I('s_add_u32 %s, %s, 1' % (sCNT, sCNT))
        g.force_wait(vm=0)
        g.I('v_cmp_ne_u32 vcc, %s, %s' % (sN, v(vt)))
        g.I('s_cmp_gt_u32 %s, %d' % (sCNT, self.o['spin_max']))
        g.branch('s_cbranch_scc1 ' + done)
        g.branch('s_cbranch_vccnz ' + top)
        g.label(done)

    def poll_local(self, v_addr, s_off, vt, wide=False, h1_flag=None):
        g = self.g
        top, done, slow, fin = self.lab('pl'), self.lab('pd'), self.lab('ps'), self.lab('pe')
        n = 2 if wide else 1
        ld = 'buffer_load_dwordx2' if wide else 'buffer_load_dword'
        g.I('s_mov_b32 %s, 0' % sCNT)
        g.label(top)
        g.I('%s %s, %s, %s, %s offen sc1' % (ld, v(vt, n), v_addr, WS, s_off))
        g.I('s_add_u32 %s, %s, 1' % (sCNT, sCNT))
        g.force_wait(vm=0)
        if wide:
            g.I('v_xor_b32 %s, %s, %s' % (v(vt), sNL, v(vt)))
            g.I('v_xor_b32 %s, %s, %s' % (v(vt + 1), sNL, v(vt + 1)))
            g.I('v_or_b32 %s, %s, %s' % (v(vt + 4), v(vt), v(vt + 1)))
            g.I('v_cmp_ne_u32 vcc, 0, %s' % v(vt + 4))
        else:
            g.I('v_cmp_ne_u32 vcc, %s, %s' % (sNL, v(vt)))
        g.I('s_cmp_lg_u32 %s, 0' % sMODE)
        g.branch('s_cbranch_scc1 ' + slow)
        g.branch('s_cbranch_vccz ' + fin)
        g.I('s_cmp_lt_u32 %s, %d' % (sCNT, self.o['h1_timeout'] if h1_flag else self.o['spin_max']))
        g.branch('s_cbranch_scc1 ' + top)
        if h1_flag:
            g.I('s_mov_b32 %s, 1' % sMODE)
            g.I('buffer_wbl2 sc1')
            g.force_wait(vm=0)
            g.I('s_add_u32 %s, %s, %d' % (sT3, h1_flag, FG_OFF))
            g.I('buffer_store_dword %s, %s, %s, %s offen sc1' % (vN, vL0, WS, sT3))
            g.force_wait(vm=0)
            g.branch('s_branch ' + top)
        else:
            g.branch('s_branch ' + fin)
        g.label(slow)
        g.I('s_add_u32 %s, %s, %d' % (sT3, s_off, FG_OFF))
        g.I('%s %s, %s, %s, %s offen sc1' % (ld, v(vt + 2, n), v_addr, WS, sT3))
        g.force_wait(vm=0)
        if wide:
            g.I('v_xor_b32 %s, %s, %s' % (v(vt + 2), sN, v(vt + 2)))
            g.I('v_xor_b32 %s, %s, %s' % (v(vt + 3), sN, v(vt + 3)))
            g.I('v_min_u32 %s, %s, %s' % (v(vt), v(vt), v(vt + 2)))
            g.I('v_min_u32 %s, %s, %s' % (v(vt + 1), v(vt + 1), v(vt + 3)))
            g.I('v_or_b32 %s, %s, %s' % (v(vt + 4), v(vt), v(vt + 1)))
            g.I('v_cmp_ne_u32 vcc, 0, %s' % v(vt + 4))
        else:
            g.I('v_cmp_ne_u32 %s, %s, %s' % (sM2, sN, v(vt + 2)))
            g.I('s_and_b64 vcc, vcc, %s' % sM2)
        g.I('s_cmp_gt_u32 %s, %d' % (sCNT, self.o['spin_max']))
        g.branch('s_cbranch_scc1 ' + done)
        g.branch('s_cbranch_vccnz ' + top)
        g.label(done)
        g.I('buffer_inv sc1')
        g.force_wait(vm=0)
        g.label(fin)

    def dma(self, v_addr, srd, s_off, lds_s, n, sc='', step=1024):
        g = self.g
        last = None
        for i in range(n):
            if i % 4 == 0:
                if i:
                    g.I('s_add_u32 %s, %s, 4096' % (lds_s, lds_s))
                    g.I('s_add_u32 %s, %s, 4096' % (s_off, s_off))
                g.I('s_mov_b32 m0, %s' % lds_s)
            last = g.I('buffer_load_dwordx4 %s, %s, %s offen offset:%d %s lds' % (v_addr, srd, s_off, (i % 4) * 1024, sc))
        return last

    def dma_rows(self, v_addr, srd, s_off, lds_s, n, gstep):
        g = self.g
        last = None
        for i in range(n):
            g.I('s_mov_b32 m0, %s' % lds_s)
            if i + 1 < n:
                g.I('s_add_u32 %s, %s, 1024' % (lds_s, lds_s))
            last = g.I('buffer_load_dwordx4 %s, %s, %s offen lds' % (v_addr, srd, s_off))
            if i + 1 < n:
                g.I('s_add_u32 %s, %s, %d' % (s_off, s_off, gstep))
        return last

    def stats_partial(self, t):
        g = self.g
        for rt in range(2):
            x = XR + 8 * rt
            s, q = t + 4 * rt, t + 4 * rt + 2
            g.I('v_pk_add_f32 %s, %s, %s' % (v(s, 2), v(x, 2), v(x + 2, 2)))
            g.I('v_pk_mul_f32 %s, %s, %s' % (v(q, 2), v(x, 2), v(x, 2)))
            g.I('v_pk_add_f32 %s, %s, %s' % (v(s, 2), v(s, 2), v(x + 4, 2)))
            g.I('v_pk_fma_f32 %s, %s, %s, %s' % (v(q, 2), v(x + 2, 2), v(x + 2, 2), v(q, 2)))
            g.I('v_pk_add_f32 %s, %s, %s' % (v(s, 2), v(s, 2), v(x + 6, 2)))
            g.I('v_pk_fma_f32 %s, %s, %s, %s' % (v(q, 2), v(x + 4, 2), v(x + 4, 2), v(q, 2)))
            g.I('v_pk_fma_f32 %s, %s, %s, %s' % (v(q, 2), v(x + 6, 2), v(x + 6, 2), v(q, 2)))
        s0, q0, s1, q1 = t, t + 2, t + 4, t + 6
        for r in (s0, q0, s1, q1):
            g.I('v_add_f32 %s, %s, %s' % (v(r), v(r), v(r + 1)))
        g.I('v_permlane32_swap_b32 %s, %s' % (v(s0), v(q0)))
        g.I('v_permlane32_swap_b32 %s, %s' % (v(s1), v(q1)))
        g.I('v_add_f32 %s, %s, %s' % (v(s0), v(s0), v(q0)))
        g.I('v_add_f32 %s, %s, %s' % (v(s1), v(s1), v(q1)))
        g.I('v_permlane16_swap_b32 %s, %s' % (v(s0), v(s1)))
        g.I('v_add_f32 %s, %s, %s' % (v(t), v(s0), v(s1)))

    def stats_store(self, t, which, vt):
        g = self.g
        g.I('s_lshl_b32 %s, %s, 12' % (sT0, sRB))
        g.I('s_lshl_b32 %s, %s, 4' % (sT1, sCB))
        g.I('s_add_u32 %s, %s, %s' % (sT0, sT0, sT1))
        g.I('s_lshl_b32 %s, %s, 2' % (sT1, sW))
        g.I('s_add_u32 %s, %s, %s' % (sT0, sT0, sT1))
        g.I('s_add_u32 %s, %s, %d' % (sT0, sT0, WS_ST + which * 0x40000))
        g.I('v_lshlrev_b32 %s, 6, %s' % (v(vt), vL))
        return g.I('buffer_store_dword %s, %s, %s, %s offen' % (v(t), v(vt), WS, sT0))

    def stats_load(self, s_rb, which, t, vt):
        g = self.g
        g.I('s_lshl_b32 %s, %s, 12' % (sT0, s_rb))
        g.I('s_add_u32 %s, %s, %d' % (sT0, sT0, WS_ST + which * 0x40000))
        g.I('v_lshlrev_b32 %s, 6, %s' % (v(vt), vL))
        for i in range(4):
            g.I('buffer_load_dwordx4 %s, %s, %s, %s offen offset:%d sc1' % (v(t + 4 * i, 4), v(vt), WS, sT0, 16 * i))

    def stats_finish(self, t):
        g = self.g
        for i in range(4):
            g.I('v_pk_add_f32 %s, %s, %s' % (v(t + 4 * i, 2), v(t + 4 * i, 2), v(t + 4 * i + 2, 2)))
        g.I('v_pk_add_f32 %s, %s, %s' % (v(t, 2), v(t, 2), v(t + 4, 2)))
        g.I('v_pk_add_f32 %s, %s, %s' % (v(t + 8, 2), v(t + 8, 2), v(t + 12, 2)))
        g.I('v_pk_add_f32 %s, %s, %s' % (v(t, 2), v(t, 2), v(t + 8, 2)))
        g.I('v_add_f32 %s, %s, %s' % (v(t), v(t), v(t + 1)))
        g.I('v_mul_f32 %s, %s, %s' % (v(t), sINV512, v(t)))
        g.I('v_mov_b32 %s, %s' % (v(t + 1), v(t)))
        g.I('v_permlane32_swap_b32 %s, %s' % (v(t), v(t + 1)))
        g.I('v_fma_f32 %s, -%s, %s, %s' % (v(t + 1), v(t), v(t), v(t + 1)))
        g.I('v_max_f32 %s, 0, %s' % (v(t + 1), v(t + 1)))
        g.I('v_add_f32 %s, %s, %s' % (v(t + 1), sEPS5, v(t + 1)))
        g.I('v_rsq_f32 %s, %s' % (v(t + 1), v(t + 1)))

    def flag_addr_rb(self, dst, kind, s_rb, s_idx):
        g = self.g
        g.I('s_lshl_b32 %s, %s, 4' % (dst, s_rb))
        g.I('s_add_u32 %s, %s, %s' % (dst, dst, s_idx))
        g.I('s_lshl_b32 %s, %s, 2' % (dst, dst))
        g.I('s_add_u32 %s, %s, %d' % (dst, dst, WS_FL + kind * 4096))

    def prologue(self):
        g = self.g
        g.I('s_cmp_ge_u32 s2, 256')
        g.branch('s_cbranch_scc1 L_end')
        if self.stamps:
            g.I('s_memrealtime s[100:101]')
        g.I('s_load_dwordx16 s[64:79], s[0:1], 0')
        g.I('s_load_dwordx8 s[80:87], s[0:1], 64')
        g.L('''
        s_and_b32 %(x)s, s2, 7
        s_lshr_b32 %(r)s, s2, 3
        v_lshrrev_b32 v4, 6, v0
        v_and_b32 v5, 7, v0
        v_readfirstlane_b32 %(w)s, v4
        v_lshrrev_b32 v6, 3, v0
        s_lshl_b32 %(t0)s, %(r)s, 16
        s_lshl_b32 %(t1)s, %(x)s, 7
        s_add_u32 %(t0)s, %(t0)s, %(t1)s
        v_lshlrev_b32 v6, 11, v6
        v_lshl_add_u32 v6, v5, 4, v6
        v_add_u32 v76, %(t0)s, v6
        v_add_u32 v77, 0xfffffc00, v76
        v_add_u32 v78, 0xfffff800, v76
        v_add_u32 v79, 0xfffff400, v76
        s_lshl_b32 %(t1)s, %(x)s, 9
        v_lshlrev_b32 v5, 6, v5
        v_add_u32 v80, %(t1)s, v5
        v_lshlrev_b32 v81, 4, v0
        s_lshl_b32 %(cp)s, %(x)s, 5
        s_add_u32 %(cp)s, %(cp)s, %(r)s
        s_lshr_b32 %(t0)s, %(r)s, 2
        s_lshl_b32 %(rb)s, %(x)s, 3
        s_add_u32 %(rb)s, %(rb)s, %(t0)s
        s_and_b32 %(cb)s, %(r)s, 3
        s_lshr_b32 %(rg)s, %(rb)s, 2
        s_and_b32 %(hp)s, %(r)s, 15
        s_mov_b32 %(mode)s, %(m0)d
        v_and_b32 v0, 63, v0
        v_lshlrev_b32 v1, 4, v0
        v_mov_b32 v2, 0x40000000
        v_cmp_eq_u32 vcc, 0, v0
        s_mov_b32 s11, 0x20000
        s_mov_b32 s15, 0x20000
        s_mov_b32 s10, 0x200000
        s_mov_b32 s14, 0x200000
        v_cndmask_b32 v2, v2, v0, vcc
        ''' % dict(x=sX, r=sR, w=sW, t0=sT0, t1=sT1, cp=sCP, rb=sRB, cb=sCB, rg=sRG, hp=sHP, mode=sMODE,
                   m0=1 if self.o['force_slow'] else 0))
        if self.stamps:
            g.I('v_mov_b32 %s, 0' % vSTAMP)
        g.L('''
        s_mov_b32 s8, s66
        s_mov_b32 s9, s67
        s_mov_b32 s12, s68
        s_mov_b32 s13, s69
        ''')
        R = [8, 12, 16, 20, 24]
        g.I('buffer_load_dwordx4 %s, v76, %s, 0 offen' % (v(R[3], 4), SK))
        g.I('buffer_load_dwordx4 %s, v76, %s, 0 offen offset:1024' % (v(R[4], 4), SK))
        g.I('buffer_load_dwordx4 %s, v76, %s, 0 offen' % (v(28, 4), SV))
        g.I('buffer_load_dwordx4 %s, v76, %s, 0 offen offset:1024' % (v(32, 4), SV))
        g.L('''
        s_mov_b32 s20, s70
        s_mov_b32 s21, s71
        s_mov_b32 s22, 4096
        s_mov_b32 s23, 0x20000
        s_mov_b32 s4, s86
        s_mov_b32 s5, s87
        s_mov_b32 s6, %d
        s_mov_b32 s7, 0x20000
        ''' % WS_SIZE)
        for i in range(4):
            g.I('buffer_load_dwordx4 %s, v80, %s, 0 offen offset:%d' % (v(36 + 4 * i, 4), SSH, 16 * i))
        g.I('buffer_load_dwordx4 %s, v77, %s, 0 offen' % (v(R[2], 4), SK))
        g.I('buffer_load_dwordx4 %s, v78, %s, 0 offen' % (v(R[1], 4), SK))
        g.I('buffer_load_dwordx4 %s, v79, %s, 0 offen' % (v(R[0], 4), SK))
        g.I('buffer_load_dword v82, off, %s, 0 sc1' % WS)
        g.L('''
        s_mov_b32 s16, s64
        s_mov_b32 s17, s65
        s_mov_b32 s18, 0x200000
        s_mov_b32 s19, 0x20000
        s_mov_b32 s24, s72
        s_mov_b32 s25, s73
        s_mov_b32 s26, 0x200000
        s_mov_b32 s27, 0x20000
        s_mov_b32 s28, s78
        s_mov_b32 s29, s79
        s_mov_b32 s30, 0x180000
        s_mov_b32 s31, 0x20000
        s_mov_b32 s32, s80
        s_mov_b32 s33, s81
        s_mov_b32 s34, 0x80000
        s_mov_b32 s35, 0x20000
        s_mov_b32 s36, s82
        s_mov_b32 s37, s83
        s_mov_b32 s38, 0x200000
        s_mov_b32 s39, 0x20000
        ''')
        g.I('v_lshlrev_b32 v83, 7, %s' % vL)
        g.I('s_lshl_b32 %s, %s, 13' % (sT0, sCP))
        g.I('s_mov_b32 %s, %d' % (sT1, WS_U))
        g.I('s_cmp_eq_u32 %s, 1' % sW)
        g.I('s_cselect_b32 %s, %d, %s' % (sT1, WS_X, sT1))
        g.I('s_cmp_eq_u32 %s, 2' % sW)
        g.I('s_cselect_b32 %s, %d, %s' % (sT1, WS_O, sT1))
        g.I('s_cmp_eq_u32 %s, 3' % sW)
        g.I('s_cselect_b32 %s, %d, %s' % (sT1, WS_X + 0x200000, sT1))
        g.I('s_add_u32 %s, %s, %s' % (sT1, sT1, sT0))
        g.I('buffer_load_dword v84, v83, %s, %s offen' % (WS, sT1))
        g.I('s_lshl_b32 %s, %s, 13' % (sT1, sCP))
        for ch in range(2):
            if ch:
                g.I('s_add_u32 %s, %s, 4096' % (sT1, sT1))
            for j in range(3):
                g.I('buffer_load_dwordx4 %s, v81, %s, %s offen offset:%d' % (v(52 + 12 * ch + 4 * j, 4), SH, sT1, 4 * j))
        g.I('s_lshl_b32 %s, %s, 2' % (sT1, sCP))
        g.I('s_load_dword %s, s[74:75], %s' % (sD0, sT1))
        g.I('s_add_u32 %s, %s, %d' % (sT1, sT0, WS_O + 0x200000))
        g.I('v_lshlrev_b32 v85, 7, %s' % vL)
        g.I('s_cmp_eq_u32 %s, 0' % sW)
        skip = self.lab('t')
        g.branch('s_cbranch_scc1 ' + skip)
        g.L('''
        v_lshrrev_b32 v86, 3, v0
        v_and_b32 v87, 7, v0
        v_lshlrev_b32 v85, 18, v86
        v_lshl_add_u32 v85, v87, 7, v85
        s_lshl_b32 %(t1)s, %(cp)s, 10
        s_add_u32 %(t1)s, %(t1)s, %(st)d
        v_add_u32 v85, %(t1)s, v85
        v_lshrrev_b32 v86, 2, v0
        v_and_b32 v86, 7, v86
        v_and_b32 v87, 3, v0
        v_lshlrev_b32 v86, 12, v86
        v_lshl_add_u32 v86, v87, 7, v86
        s_lshl_b32 %(t1)s, %(x)s, 9
        s_add_u32 %(t1)s, %(t1)s, %(fl)d
        v_add_u32 v86, %(t1)s, v86
        v_cmp_gt_u32 vcc, 32, v0
        s_mov_b32 %(t1)s, 0
        v_cndmask_b32 v85, v86, v85, vcc
        ''' % dict(t1=sT1, cp=sCP, x=sX, st=WS_ST, fl=WS_FL))
        g.label(skip)
        g.I('buffer_load_dword v84, v85, %s, %s offen' % (WS, sT1))
        g.I('s_getpc_b64 s[62:63]')
        g.I('s_lshl_b32 %s, %s, 13' % (sT1, sW))
        g.I('v_add_u32 v83, %s, v83' % sT1)
        g.I('v_min_u32 v83, L_end-L_pc-4, v83')
        g.raw('L_pc:')
        g.I('global_load_dword v87, v83, s[62:63]')
        g.L('''
        s_mov_b32 %s, 0x05040100
        s_mov_b32 %s, 0x07060302
        s_mov_b32 %s, 0xffff0000
        s_mov_b32 %s, 0x3f800008
        s_mov_b32 %s, 0x358637bd
        s_mov_b32 %s, 0x3b000000
        s_mov_b32 %s, 0x3727c5ac
        s_mov_b32 %s, 0x3fb8aa3b
        s_mov_b32 %s, 0x00003f80
        s_mov_b32 %s, 0x3f800000
        ''' % (sSELLO, sSELHI, sHI16, sC1, sEPS6, sINV512, sEPS5, sLOG2E, sE0, sE1))
        for i in range(4):
            g.I('v_mov_b32 %s, 0x3f803f80' % v(ONES + i))
        g.L('''
        v_and_b32 v4, 15, v0
        v_lshrrev_b32 v5, 4, v0
        v_lshlrev_b32 v3, 10, v4
        v_lshl_add_u32 v3, v5, 4, v3
        s_lshl_b32 %(t0)s, %(rb)s, 15
        s_lshl_b32 %(t1)s, %(cb)s, 8
        s_add_u32 %(t0)s, %(t0)s, %(t1)s
        s_lshl_b32 %(t1)s, %(w)s, 6
        s_add_u32 %(t0)s, %(t0)s, %(t1)s
        v_add_u32 v3, %(t0)s, v3
        s_getreg_b32 %(t2)s, hwreg(HW_REG_XCC_ID, 0, 4)
        ''' % dict(t0=sT0, t1=sT1, t2=sT2, rb=sRB, cb=sCB, w=sW))
        self.stamp('prologue')

    def phase_a0(self):
        g = self.g
        R = [8, 12, 16, 20, 24]
        V = [28, 32]
        SHR = 36
        T = 128
        OUT = 160
        g.L('''
        v_lshrrev_b32 v176, 3, v0
        v_and_b32 v177, 7, v0
        v_lshlrev_b32 v176, 8, v176
        v_lshl_add_u32 v176, v177, 4, v176
        s_lshl_b32 %(t0)s, %(w)s, 11
        s_add_u32 %(t0)s, %(t0)s, %(scr)d
        v_add_u32 v176, %(t0)s, v176
        v_lshrrev_b32 v177, 4, v0
        v_and_b32 v178, 1, v177
        v_lshrrev_b32 v179, 1, v177
        v_bfe_u32 v180, v0, 2, 2
        v_and_b32 v181, 3, v0
        v_lshl_add_u32 v180, v178, 3, v180
        v_sub_u32 v180, 11, v180
        v_lshlrev_b32 v180, 7, v180
        v_lshl_add_u32 v180, v179, 5, v180
        v_lshl_add_u32 v180, v181, 3, v180
        v_add_u32 v180, %(t0)s, v180
        v_and_b32 v181, 15, v0
        v_lshrrev_b32 v182, 1, v181
        v_lshl_add_u32 v182, v179, 3, v182
        v_lshlrev_b32 v182, 13, v182
        v_and_b32 v181, 1, v181
        v_lshl_add_u32 v182, v181, 5, v182
        v_lshl_add_u32 v182, v178, 4, v182
        ''' % dict(t0=sT0, w=sW, scr=L_SCR))
        for c in range(8):
            d, sel = c >> 1, (sSELHI if c & 1 else sSELLO)
            for i in range(4):
                g.I('v_perm_b32 %s, %s, %s, %s' % (v(T + 4 * c + i), v(R[i] + d), v(R[i + 1] + d), sel))
        for c in range(8):
            w01, w23 = SHR + 2 * c, SHR + 2 * c + 1
            g.I('v_dot2_f32_bf16 %s, %s, %s, 0' % (v(OUT + c), v(T + 4 * c + 2), v(w01)))
            g.I('v_dot2_f32_bf16 %s, %s, %s, 0' % (v(OUT + 8 + c), v(T + 4 * c + 3), v(w01)))
        for c in range(8):
            w01, w23 = SHR + 2 * c, SHR + 2 * c + 1
            g.I('v_dot2_f32_bf16 %s, %s, %s, %s' % (v(OUT + c), v(T + 4 * c + 0), v(w23), v(OUT + c)))
            g.I('v_dot2_f32_bf16 %s, %s, %s, %s' % (v(OUT + 8 + c), v(T + 4 * c + 1), v(w23), v(OUT + 8 + c)))
        for row in range(2):
            for d in range(4):
                g.I('v_lshlrev_b32 %s, 16, %s' % (v(T + 8 * row + 2 * d), v(V[row] + d)))
                g.I('v_and_b32 %s, %s, %s' % (v(T + 8 * row + 2 * d + 1), sHI16, v(V[row] + d)))
        for i in range(8):
            g.I('v_pk_mul_f32 %s, %s, %s' % (v(OUT + 2 * i, 2), v(OUT + 2 * i, 2), v(T + 2 * i, 2)))
        for i in range(8):
            g.I('v_cvt_pk_bf16_f32 %s, %s, %s' % (v(T + 16 + i), v(OUT + 2 * i), v(OUT + 2 * i + 1)))
        g.I('ds_write_b128 v176, %s' % v(T + 16, 4))
        g.I('ds_write_b128 v176, %s offset:128' % v(T + 20, 4))
        g.I('v_readfirstlane_b32 %s, v82' % sN)
        g.I('s_mul_i32 %s, %s, 0x9e3779b1' % (sN, sN))
        g.I('s_add_u32 %s, %s, 0x7f4a7c15' % (sN, sN))
        g.I('s_xor_b32 %s, %s, %s' % (sNL, sN, sT2))
        g.I('v_mov_b32 %s, %s' % (vN, sN))
        g.I('v_mov_b32 %s, %s' % (vNL, sNL))
        g.wait_lg()
        for j in range(2):
            g.I('ds_read_b64_tr_b16 %s, v180 offset:%d' % (v(T + 4 * j, 2), 512 + 64 * j))
            g.I('ds_read_b64_tr_b16 %s, v180 offset:%d' % (v(T + 4 * j + 2, 2), 64 * j))
        g.L('''
        s_lshl_b32 %(t0)s, %(x)s, 18
        s_lshl_b32 %(t1)s, %(r)s, 8
        s_add_u32 %(t0)s, %(t0)s, %(t1)s
        s_lshl_b32 %(t1)s, %(w)s, 6
        s_add_u32 %(t0)s, %(t0)s, %(t1)s
        s_add_u32 %(t0)s, %(t0)s, %(u)d
        s_add_u32 %(t1)s, %(t0)s, 0x20000
        ''' % dict(t0=sT0, t1=sT1, x=sX, r=sR, w=sW, u=WS_U))
        g.I('buffer_store_dwordx4 %s, v182, %s, %s offen' % (v(T, 4), WS, sT0))
        st = g.I('buffer_store_dwordx4 %s, v182, %s, %s offen' % (v(T + 4, 4), WS, sT1))
        self.stamp('a0 stores')
        g.L('''
        s_lshl_b32 %(t1)s, %(r)s, 2
        s_add_u32 %(t1)s, %(t1)s, %(w)s
        s_lshl_b32 %(t1)s, %(t1)s, 2
        s_lshl_b32 %(t0)s, %(x)s, 9
        s_add_u32 %(t0)s, %(t0)s, %(fl)d
        s_add_u32 %(t1)s, %(t1)s, %(t0)s
        ''' % dict(t0=sT0, t1=sT1, x=sX, r=sR, w=sW, fl=WS_FL + FK_H1 * 4096))
        self.publish_local(st, sT1)
        self.stamp('h1 published')

    def build_h(self):
        g = self.g
        T = 128
        g.I('v_add_u32 v81, %d, v81' % (L_H + 32))
        for ch in range(2):
            La, Lb, Lc = 52 + 12 * ch, 56 + 12 * ch, 60 + 12 * ch
            for k in range(4):
                g.I('v_alignbit_b32 %s, %s, %s, 16' % (v(T + 8 * ch + k), v(Lb + k), v(La + k)))
                g.I('v_alignbit_b32 %s, %s, %s, 16' % (v(T + 8 * ch + 4 + k), v(Lc + k), v(Lb + k)))
            for rho, src in enumerate((La, T + 8 * ch, Lb, T + 8 * ch + 4)):
                g.I('ds_write_b128 v81, %s offset:%d' % (v(src, 4), ch * HCH + rho * HCOPY))
        for i in range(4):
            g.I('v_mov_b32 %s, 0' % v(T + 16 + i))
        l1, l2 = self.lab('h'), self.lab('h')
        g.I('s_cmp_lg_u32 %s, 0' % sW)
        g.branch('s_cbranch_scc1 ' + l1)
        g.cond_begin()
        g.I('s_mov_b64 exec, 1')
        Z = T + 16
        for ch in range(2):
            La = 52 + 12 * ch
            b = T + 20 + 12 * ch
            for i in range(12):
                g.I('v_mov_b32 %s, 0' % v(b + i))
            g.I('v_lshlrev_b32 %s, 16, %s' % (v(b + 3), v(La)))
            g.I('v_mov_b32 %s, %s' % (v(b + 7), v(La)))
            g.I('v_lshlrev_b32 %s, 16, %s' % (v(b + 10), v(La)))
            g.I('v_alignbit_b32 %s, %s, %s, 16' % (v(b + 11), v(La + 1), v(La)))
            for rho in range(4):
                g.I('ds_write_b128 %s, %s offset:%d' % (vL16, v(Z, 4), L_H + ch * HCH + rho * HCOPY))
                src = Z if rho == 0 else b + 4 * (rho - 1)
                g.I('ds_write_b128 %s, %s offset:%d' % (vL16, v(src, 4), L_H + ch * HCH + rho * HCOPY + 16))
        g.I('s_mov_b64 exec, -1')
        g.cond_end()
        g.label(l1)
        g.I('s_cmp_lg_u32 %s, 1' % sW)
        g.branch('s_cbranch_scc1 ' + l2)
        g.cond_begin()
        g.I('v_lshrrev_b32 %s, 5, %s' % (v(T + 20), vL))
        g.I('v_and_b32 %s, 31, %s' % (v(T + 21), vL))
        g.I('v_mul_u32_u24 %s, %d, %s' % (v(T + 20), UCH, v(T + 20)))
        g.I('v_lshl_add_u32 %s, %s, 4, %s' % (v(T + 20), v(T + 21), v(T + 20)))
        g.I('ds_write_b128 %s, %s offset:%d' % (v(T + 20), v(Z, 4), L_U + 4096))
        g.cond_end()
        g.label(l2)

    def phase_h1(self):
        g = self.g
        g.L('''
        v_lshrrev_b32 v8, 1, v0
        v_sub_u32 v8, 31, v8
        v_lshlrev_b32 v8, 6, v8
        v_and_b32 v9, 1, v0
        v_lshl_add_u32 v8, v9, 4, v8
        v_lshlrev_b32 v9, 3, v0
        ''')
        g.L('''
        v_lshrrev_b32 v10, 2, v0
        v_mul_u32_u24 v10, 3072, v10
        v_lshrrev_b32 v11, 4, v0
        v_and_b32 v11, 2, v11
        v_and_b32 v12, 3, v0
        v_xor_b32 v11, v11, v12
        v_lshl_add_u32 v6, v11, 4, v10
        v_add_u32 v13, 0x4000, v3
        ''')
        g.I('s_mov_b32 %s, %s' % (sT2, sT1))
        self.poll_local('v9', sT0, 14, wide=True, h1_flag=sT2)
        self.stamp('h1 seen')
        g.L('''
        s_lshl_b32 %(t0)s, %(cp)s, 13
        s_add_u32 %(t0)s, %(t0)s, %(u)d
        s_and_b32 %(t1)s, %(w)s, 1
        s_lshl_b32 %(t2)s, %(t1)s, 5
        s_add_u32 %(t0)s, %(t0)s, %(t2)s
        s_mul_i32 %(t1)s, %(t1)s, %(uch)d
        s_lshr_b32 %(t2)s, %(w)s, 1
        s_lshl_b32 %(t3)s, %(t2)s, 11
        s_add_u32 %(t1)s, %(t1)s, %(t3)s
        s_add_u32 %(t1)s, %(t1)s, %(lu)d
        s_lshl_b32 %(t2)s, %(t2)s, 12
        s_sub_u32 %(t0)s, %(t0)s, %(t2)s
        s_add_u32 %(t0)s, %(t0)s, 6144
        s_mov_b32 m0, %(t1)s
        ''' % dict(t0=sT0, t1=sT1, t2=sT2, t3=sT3, cp=sCP, w=sW, u=WS_U, uch=UCH, lu=L_U))
        g.I('buffer_load_dwordx4 v8, %s, %s offen sc1 lds' % (WS, sT0))
        g.I('s_add_u32 m0, %s, 1024' % sT1)
        g.I('s_sub_u32 %s, %s, 2048' % (sT0, sT0))
        ud = g.I('buffer_load_dwordx4 v8, %s, %s offen sc1 lds' % (WS, sT0))
        g.I('buffer_load_dwordx4 %s, v3, %s, 0 offen' % (v(YPK, 4), SQ))
        g.I('buffer_load_dwordx4 %s, v13, %s, 0 offen' % (v(YPK + 4, 4), SQ))
        for p in range(2):
            g.I('s_mul_i32 %s, %s, %d' % (sT0, sW, 128 * 3072))
            g.I('s_lshl_b32 %s, %s, 6' % (sT1, sHP))
            g.I('s_add_u32 %s, %s, %s' % (sT0, sT0, sT1))
            g.I('s_add_u32 %s, %s, %d' % (sT0, sT0, 1024 * (p + 1)))
            g.I('s_lshl_b32 %s, %s, 13' % (sT1, sW))
            g.I('s_add_u32 %s, %s, %d' % (sT1, sT1, L_WKV + 32768 * p))
            self.wkv_last = self.dma_rows('v6', SW, sT0, sT1, 8, 16 * 3072)
        g.L('''
        v_and_b32 v10, 15, v0
        v_lshrrev_b32 v11, 4, v0
        v_add_u32 v12, 1, v10
        v_and_b32 v13, 3, v12
        v_lshrrev_b32 v12, 2, v12
        v_mul_u32_u24 v13, %(hc)d, v13
        v_lshl_add_u32 v13, v12, 3, v13
        v_lshl_add_u32 v13, v11, 4, v13
        s_and_b32 %(t0)s, %(w)s, 1
        s_lshr_b32 %(t1)s, %(w)s, 1
        s_lshl_b32 %(t1)s, %(t1)s, 8
        s_mul_i32 %(t2)s, %(t0)s, %(hch)d
        s_add_u32 %(t2)s, %(t2)s, %(t1)s
        v_add_u32 v4, %(t2)s, v13
        s_mul_i32 %(t2)s, %(t0)s, %(uch)d
        s_add_u32 %(t2)s, %(t2)s, %(t1)s
        s_add_u32 %(t2)s, %(t2)s, %(ub)d
        v_lshlrev_b32 v12, 5, v10
        v_lshlrev_b32 v13, 4, v11
        v_sub_u32 v13, v13, v12
        v_add_u32 v5, %(t2)s, v13
        v_lshlrev_b32 v13, 3, v11
        v_add_u32 v13, v13, v12
        s_lshl_b32 %(t2)s, %(w)s, 10
        s_sub_u32 %(t2)s, %(ud)d, %(t2)s
        v_sub_u32 v40, %(t2)s, v13
        s_lshl_b32 %(t2)s, %(w)s, 13
        s_add_u32 %(t2)s, %(t2)s, %(red)d
        v_add_u32 v41, %(t2)s, v1
        s_lshl_b32 %(t2)s, %(w)s, 11
        s_add_u32 %(t2)s, %(t2)s, %(red)d
        v_add_u32 v42, %(t2)s, v1
        v_lshrrev_b32 v12, 1, v10
        v_lshlrev_b32 v43, 15, v12
        v_and_b32 v12, 1, v10
        v_lshl_add_u32 v43, v12, 5, v43
        v_and_b32 v12, 1, v11
        v_lshl_add_u32 v43, v12, 6, v43
        v_lshrrev_b32 v12, 1, v11
        v_lshl_add_u32 v43, v12, 4, v43
        s_and_b32 %(d1)s, %(d0)s, %(hi)s
        s_lshl_b32 %(d0)s, %(d0)s, 16
        ''' % dict(t0=sT0, t1=sT1, t2=sT2, w=sW, hc=HCOPY, hch=HCH, uch=UCH, ub=L_U + 480, ud=L_U + 4088 - 512,
                   red=L_RED, d0=sD0, d1=sD1, hi=sHI16))
        g.wait_vm(ud)
        g.barrier()
        self.stamp('u landed')

    def phase_conv(self):
        g = self.g
        Y, A, B = 8, 128, 160
        DU, DUP = 44, 60

        def ldA(f, gg):
            return ['ds_read_b64 %s, v4 offset:%d' % (v(A + 4 * f, 2), 512 * f + 64 * gg),
                    'ds_read_b64 %s, v4 offset:%d' % (v(A + 4 * f + 2, 2), 512 * f + 64 * gg + 8)]

        def ldB(n, gg):
            return ['ds_read_b128 %s, v5 offset:%d' % (v(B + 4 * n, 4), 512 * (7 - n) + 64 * gg)]

        for i in ldA(0, 0):
            g.I(i)
        for n in range(7, -1, -1):
            g.I(ldB(n, 0)[0])
        pend = []
        for f in range(1, 8):
            pend += ldA(f, 0)
        side = []
        for i in range(2):
            for ch in range(2):
                side.append('ds_read_b64 %s, v40 offset:%d' % (v(DUP + 4 * i + 2 * ch, 2), ch * UCH + 512 * (1 - i)))
        for i in range(2):
            for ch in range(2):
                p, d, D = DUP + 4 * i + 2 * ch, DU + 8 * i + 4 * ch, (sD1 if ch else sD0)
                side += ['v_and_b32 %s, %s, %s' % (v(d), sHI16, v(p + 1)),
                         'v_lshlrev_b32 %s, 16, %s' % (v(d + 1), v(p + 1)),
                         'v_and_b32 %s, %s, %s' % (v(d + 2), sHI16, v(p)),
                         'v_lshlrev_b32 %s, 16, %s' % (v(d + 3), v(p))]
                side += ['v_mul_f32 %s, %s, %s' % (v(d + r), D, v(d + r)) for r in range(4)]
        for gg in range(3):
            for f in range(8):
                for n in range(7 - f, -1, -1):
                    g.I(mf32(v(Y + 4 * (f + n), 4), v(A + 4 * f, 4), v(B + 4 * n, 4), '0' if (gg == 0 and f == 0) else None))
                    q = []
                    if n == 7 - f:
                        q += ldB(n, gg + 1)
                    if n == 0:
                        q += ldA(f, gg + 1)
                    for i in q:
                        g.I(i)
                    k = 2 - len(q)
                    while k > 0 and pend:
                        g.I(pend.pop(0)); k -= 1
                    while k > 0 and gg >= 1 and side:
                        g.I(side.pop(0)); k -= 1
        assert not pend
        done = []
        for n in (6, 5, 4, 3, 2, 1, 0, 7):
            for f in range(n + 1):
                g.I(mf32(v(Y + 4 * n, 4), v(A + 4 * f, 4), v(B + 4 * (n - f), 4)))
                done = [(t, age + 1) for (t, age) in done]
                if done and done[0][1] >= 4:
                    t = done.pop(0)[0]
                    g.I('ds_write_b128 v41, %s offset:%d' % (v(Y + 4 * t, 4), 1024 * t))
                elif side:
                    g.I(side.pop(0))
            done.append((n, 0))
        for i in side:
            g.I(i)
        for (t, _) in done:
            g.I('ds_write_b128 v41, %s offset:%d' % (v(Y + 4 * t, 4), 1024 * t))
        g.barrier()
        self.stamp('conv done')
        P = 128
        for i in range(2):
            for ch in range(2):
                for gh in range(2):
                    g.I('ds_read_b128 %s, v42 offset:%d' % (v(P + 16 * i + 8 * ch + 4 * gh, 4), (2 * gh + ch) * 8192 + 1024 * i))
        g.L('''
        s_lshl_b32 %(t0)s, %(w)s, 19
        s_lshl_b32 %(t1)s, %(cp)s, 7
        s_add_u32 %(t0)s, %(t0)s, %(t1)s
        s_add_u32 %(t0)s, %(t0)s, %(y)d
        s_add_u32 %(t1)s, %(t0)s, 0x40000
        ''' % dict(t0=sT0, t1=sT1, w=sW, cp=sCP, y=WS_Y))
        for i in range(2):
            o = 8 + 4 * i
            for ch in range(2):
                p, d = P + 16 * i + 8 * ch, DU + 8 * i + 4 * ch
                for h in range(2):
                    g.I('v_pk_add_f32 %s, %s, %s' % (v(d + 2 * h, 2), v(d + 2 * h, 2), v(p + 2 * h, 2)))
                for h in range(2):
                    g.I('v_pk_add_f32 %s, %s, %s' % (v(d + 2 * h, 2), v(d + 2 * h, 2), v(p + 4 + 2 * h, 2)))
                for h in range(2):
                    g.I('v_cvt_pk_bf16_f32 %s, %s, %s' % (v(o + 2 * ch + h), v(d + 2 * h), v(d + 2 * h + 1)))
            g.I('v_permlane16_swap_b32 %s, %s' % (v(o), v(o + 2)))
            g.I('v_permlane16_swap_b32 %s, %s' % (v(o + 1), v(o + 3)))
            g.I('buffer_store_dwordx4 %s, v43, %s, %s offen sc1' % (v(o, 4), WS, sT1 if i else sT0))
        self.stamp('y stored')

    def wo_dma(self, quarter):
        g = self.g
        g.L('''
        s_lshl_b32 %(t0)s, %(cb)s, 8
        s_lshl_b32 %(t1)s, %(w)s, 6
        s_add_u32 %(t0)s, %(t0)s, %(t1)s
        s_add_u32 %(t0)s, %(t0)s, %(qo)d
        s_lshl_b32 %(t1)s, %(w)s, 13
        s_add_u32 %(t1)s, %(t1)s, %(l)d
        ''' % dict(t0=sT0, t1=sT1, cb=sCB, w=sW, qo=quarter * 128 * 1024, l=L_WO[quarter]))
        return self.dma_rows('v40', SWO, sT0, sT1, 8, 16 * 1024)

    def wo_reads(self, quarter, vb):
        out = []
        for h in range(4):
            hp = 4 * quarter + h
            for tau in range(2):
                for u in range(2):
                    out.append('ds_read_b64_tr_b16 %s, %s offset:%d' % (
                        v(WO0 + 64 * tau + 4 * hp + 2 * u, 2), vb, 2048 * h + 1024 * u + 8 * tau))
        return out

    def phase_h2(self):
        g = self.g
        for i in range(8):
            g.I('v_lshlrev_b32 %s, 16, %s' % (v(XR + 2 * i), v(YPK + i)))
            g.I('v_and_b32 %s, %s, %s' % (v(XR + 2 * i + 1), sHI16, v(YPK + i)))
        self.stats_partial(16)
        st = self.stats_store(16, 0, 24)
        g.L('''
        v_lshrrev_b32 v40, 2, v0
        v_and_b32 v41, 3, v0
        v_lshlrev_b32 v40, 10, v40
        v_lshl_add_u32 v40, v41, 4, v40
        ''')
        g.I('s_mul_i32 %s, %s, %d' % (sT0, sW, 128 * 3072))
        g.I('s_lshl_b32 %s, %s, 6' % (sT1, sHP))
        g.I('s_add_u32 %s, %s, %s' % (sT0, sT0, sT1))
        g.I('s_lshl_b32 %s, %s, 13' % (sT1, sW))
        g.I('s_add_u32 %s, %s, %d' % (sT1, sT1, L_WQ))
        wq_last = self.dma_rows('v6', SW, sT0, sT1, 8, 16 * 3072)
        wo0 = self.wo_dma(0)
        g.L('''
        s_lshl_b32 %(t0)s, %(cp)s, 2
        s_add_u32 %(t0)s, %(t0)s, %(w)s
        s_lshl_b32 %(t0)s, %(t0)s, 6
        s_add_u32 %(t0)s, %(t0)s, %(f2)d
        s_lshl_b32 %(t2)s, %(cb)s, 2
        s_add_u32 %(t2)s, %(t2)s, %(w)s
        ''' % dict(t0=sT0, t2=sT2, cp=sCP, cb=sCB, w=sW, f2=WS_F2))
        self.flag_addr_rb(sT1, FK_S, sRB, sT2)
        self.publish_global(st, sT0)
        self.publish_local(st, sT1)
        self.stamp('h2 published')
        g.L('''
        v_lshrrev_b32 v10, 4, v0
        v_bfe_u32 v11, v0, 2, 2
        v_and_b32 v12, 3, v0
        v_lshl_add_u32 v13, v10, 3, v11
        v_lshlrev_b32 v13, 6, v13
        v_lshl_add_u32 v13, v12, 3, v13
        v_and_b32 v14, 1, v10
        v_lshl_add_u32 v41, v14, 5, v13
        v_xor_b32 v42, 32, v41
        s_and_b32 %(t0)s, %(w)s, 1
        s_lshl_b32 %(t0)s, %(t0)s, 5
        v_xor_b32 v43, %(t0)s, v41
        v_add_u32 v43, %(wkv)d, v43
        v_lshl_add_u32 v13, v10, 2, v11
        v_lshlrev_b32 v13, 6, v13
        v_lshl_add_u32 v13, v12, 4, v13
        s_lshl_b32 %(t0)s, %(w)s, 13
        v_add_u32 v13, %(t0)s, v13
        v_add_u32 v44, %(o0)d, v13
        v_add_u32 v45, %(o1)d, v13
        v_add_u32 v46, %(o2)d, v13
        v_add_u32 v47, %(o3)d, v13
        ''' % dict(t0=sT0, w=sW, wkv=L_WKV, o0=L_WO[0], o1=L_WO[1], o2=L_WO[2], o3=L_WO[3]))
        g.barrier()
        wo1 = self.wo_dma(1)
        for p in range(2):
            for ks in range(16):
                for u in range(2):
                    g.I('ds_read_b64_tr_b16 %s, v43 offset:%d' % (a(64 * p + 4 * ks + 2 * u, 2), 32768 * p + 2048 * ks + 256 * u))
        g.wait_vm(wq_last)
        g.barrier()
        wo2 = self.wo_dma(2)
        wo3 = self.wo_dma(3)
        rd = []
        for hh in range(2):
            for ks in range(16):
                for u in range(2):
                    rd.append('ds_read_b64_tr_b16 %s, %s offset:%d' % (a(128 + 64 * hh + 4 * ks + 2 * u, 2), 'v42' if hh else 'v41', 2048 * ks + 256 * u))
        mfs = []
        for p in range(2):
            for ks in range(16):
                mfs.append(mf32(v(8 + 4 * p, 4), v(ONES, 4), a(64 * p + 4 * ks, 4), '0' if ks == 0 else None))
        weave(g, mfs, rd, per=2)
        g.wait_vm(wo1)
        rd = self.wo_reads(0, 'v44') + self.wo_reads(1, 'v45')
        mfs = []
        for hh in range(2):
            for ks in range(16):
                mfs.append(mf32(v(CSQ + 4 * hh, 4), a(128 + 64 * hh + 4 * ks, 4), v(ONES, 4), '0' if ks == 0 else None))
        weave(g, mfs, rd, per=1)
        g.I('v_mov_b32 %s, v8' % v(CSK))
        g.I('v_mov_b32 %s, v12' % v(CSV))
        g.wait_vm(wo3)
        for i in self.wo_reads(2, 'v46') + self.wo_reads(3, 'v47'):
            g.I(i)
        self.stamp('weights done')
        g.L('''
        v_and_b32 v10, 15, v0
        v_lshlrev_b32 v10, 8, v10
        s_lshl_b32 %(t0)s, %(cb)s, 2
        s_add_u32 %(t0)s, %(t0)s, %(w)s
        s_lshl_b32 %(t1)s, %(t0)s, 11
        s_lshl_b32 %(t0)s, %(t0)s, 12
        s_lshr_b32 %(t2)s, %(rb)s, 4
        s_lshl_b32 %(t2)s, %(t2)s, 6
        s_add_u32 %(t0)s, %(t0)s, %(t2)s
        s_add_u32 %(t0)s, %(t0)s, %(f2)d
        s_lshl_b32 %(t2)s, %(rb)s, 15
        s_add_u32 %(t1)s, %(t1)s, %(t2)s
        s_add_u32 %(t1)s, %(t1)s, %(y)d
        ''' % dict(t0=sT0, t1=sT1, t2=sT2, cb=sCB, w=sW, rb=sRB, f2=WS_F2, y=WS_Y))
        self.poll_global('v10', sT0, 11)
        self.stamp('h2 seen')
        g.I('buffer_load_dwordx4 v[8:11], %s, %s, %s offen sc1' % (vL16, WS, sT1))
        g.I('buffer_load_dwordx4 v[12:15], %s, %s, %s offen offset:1024 sc1' % (vL16, WS, sT1))
        g.L('''
        s_lshl_b32 %(t0)s, %(w)s, 13
        s_add_u32 %(t0)s, %(t0)s, %(o3)d
        v_add_u32 v16, %(t0)s, v1
        v_lshrrev_b32 v17, 4, v0
        v_bfe_u32 v18, v0, 2, 2
        v_and_b32 v19, 3, v0
        v_lshl_add_u32 v17, v17, 3, v18
        v_lshlrev_b32 v17, 6, v17
        v_lshl_add_u32 v17, v19, 3, v17
        v_add_u32 v17, %(t0)s, v17
        ''' % dict(t0=sT0, w=sW, o3=L_WO[3]))
        g.wait_lg()
        g.I('ds_write_b128 v16, v[8:11]')
        g.I('ds_write_b128 v16, v[12:15] offset:1024')
        g.wait_lg()
        for rt in range(2):
            for tau in range(2):
                g.I('ds_read_b64_tr_b16 %s, v17 offset:%d' % (v(YPK + 4 * rt + 2 * tau, 2), 256 * tau + 32 * rt))
        self.stamp('y loaded')

    def phase_e(self, layer):
        g = self.g
        g.I('v_and_b32 v40, 15, %s' % vL)
        g.I('v_lshlrev_b32 v40, 2, v40')
        g.I('s_lshl_b32 %s, %s, 6' % (sT1, sRB))
        g.I('s_add_u32 %s, %s, %d' % (sT1, sT1, WS_FL + (FK_S + layer) * 4096))
        self.poll_local('v40', sT1, 42)
        self.stamp('stats seen')
        self.stats_load(sRB, 2 * layer, 8, 40)
        YU = 24
        for i in range(8):
            g.I('v_lshlrev_b32 %s, 16, %s' % (v(YU + 2 * i), v(YPK + i)))
            g.I('v_and_b32 %s, %s, %s' % (v(YU + 2 * i + 1), sHI16, v(YPK + i)))
        g.L('''
        s_lshl_b32 %(t0)s, %(cb)s, 2
        s_add_u32 %(t2)s, %(t0)s, %(w)s
        s_lshl_b32 %(t0)s, %(t2)s, 10
        s_lshl_b32 %(t1)s, %(rb)s, 15
        s_add_u32 %(t0)s, %(t0)s, %(t1)s
        s_add_u32 s64, %(t0)s, %(x)d
        s_add_u32 s65, s64, 0x4000
        ''' % dict(t0=sT0, t1=sT1, t2=sT2, cb=sCB, w=sW, rb=sRB, x=WS_X + layer * 0x200000))
        self.flag_addr_rb('s66', FK_X + layer, sRB, sT2)
        self.stats_finish(8)
        g.I('v_mul_f32 v10, -v8, v9')
        g.I('v_mov_b32 v12, v9')
        g.I('v_mov_b32 v13, v10')
        g.I('v_mov_b32 v8, v9')
        g.I('v_mov_b32 v9, v10')
        g.I('v_permlane16_swap_b32 v8, v12')
        g.I('v_permlane16_swap_b32 v9, v13')
        T = 48
        for rt in range(2):
            rm = 8 + 4 * rt
            for i in range(4):
                x = XR + 8 * rt + 2 * i
                g.I('v_pk_fma_f32 %s, %s, %s, %s op_sel:[0,0,1] op_sel_hi:[1,0,1]' % (v(T + 2 * i, 2), v(x, 2), v(rm, 2), v(rm, 2)))
            for i in range(4):
                x = XR + 8 * rt + 2 * i
                g.I('v_pk_fma_f32 %s, %s, %s, %s' % (v(x, 2), v(T + 2 * i, 2), v(YU + 8 * rt + 2 * i, 2), v(x, 2)))
            for i in range(4):
                x = XR + 8 * rt + 2 * i
                g.I('v_cvt_pk_bf16_f32 %s, %s, %s' % (v(56 + 4 * rt + i), v(x), v(x + 1)))
            g.I('buffer_store_dwordx4 %s, %s, %s, %s offen' % (v(56 + 4 * rt, 4), vL16, WS, 's65' if rt else 's64'))
        self.stats_partial(16)
        st = self.stats_store(16, 2 * layer + 1, 40)
        self.publish_local(st, 's66')
        self.stamp('x published')

    def phi_ops(self, acc, u, e, t1, m, cs, r, r2, dst):
        return ['v_fma_f32 %s, -%s, %s, %s' % (u, m, cs, acc),
                'v_mul_f32 %s, %s, %s' % (e, u, r2),
                'v_exp_f32 %s, %s clamp' % (e, e),
                'v_fma_f32 %s, %s, %s, %s' % (t1, u, r, sC1),
                'v_add_f32 %s, %s, %s' % (e, sEPS6, e),
                'v_max_f32 %s, %s, %s' % (dst, t1, e)]

    def phase_gemm(self, layer):
        g = self.g
        g.I('v_lshlrev_b32 v40, 2, %s' % vL)
        g.I('s_lshl_b32 %s, %s, 8' % (sT1, sRG))
        g.I('s_add_u32 %s, %s, %d' % (sT1, sT1, WS_FL + (FK_X + layer) * 4096))
        g.L('''
        s_lshl_b32 s64, %(rg)s, 2
        s_add_u32 s64, s64, %(w)s
        s_lshr_b32 %(t0)s, %(w)s, 1
        s_lshl_b32 s65, %(t0)s, 16
        s_and_b32 %(t0)s, %(w)s, 1
        s_lshl_b32 %(t0)s, %(t0)s, 13
        s_add_u32 s66, s65, %(t0)s
        s_lshl_b32 s67, %(rg)s, 17
        s_add_u32 s67, s67, s66
        s_add_u32 s67, s67, %(x)d
        v_add_u32 v4, s65, v1
        s_lshl_b32 %(t0)s, %(w)s, 15
        v_add_u32 v5, %(t0)s, v1
        v_lshrrev_b32 v41, 4, v0
        v_lshlrev_b32 v6, 4, v41
        s_lshr_b32 %(t0)s, s65, 8
        s_add_u32 %(t0)s, %(t0)s, %(tab)d
        v_add_u32 v6, %(t0)s, v6
        ''' % dict(rg=sRG, w=sW, t0=sT0, x=WS_X + layer * 0x200000, tab=L_TAB))
        self.poll_local('v40', sT1, 42)
        self.stamp('x seen')
        self.stats_load('s64', 2 * layer + 1, 8, 40)
        stage = []
        for j in range(4):
            if j:
                g.I('s_add_u32 s66, s66, %d' % (16384 - 4096))
                g.I('s_add_u32 s67, s67, %d' % (16384 - 4096))
            stage.append(self.dma(vL16, WS, 's67', 's66', 8, 'sc1'))
        self.stats_finish(8)
        g.L('''
        v_mul_f32 v10, %(l2e)s, v9
        v_cmp_gt_u32 vcc, 32, v0
        v_and_b32 v11, 31, v0
        v_lshrrev_b32 v12, 5, v0
        v_lshlrev_b32 v11, 2, v11
        s_lshl_b32 %(t0)s, %(w)s, 7
        s_add_u32 %(t0)s, %(t0)s, %(tab)d
        v_cndmask_b32 v8, v9, v8, vcc
        v_add_u32 v11, %(t0)s, v11
        v_lshl_add_u32 v12, v12, 9, v11
        ds_write_b32 v12, v8
        ds_write_b32 v11, v10 offset:1024
        ''' % dict(l2e=sLOG2E, t0=sT0, w=sW, tab=L_TAB))
        ACC = [8, 16]
        FR = 24
        M4, R4, R2 = 40, 44, 76
        U, E, T1 = 48, 52, 56
        PK, VP, KVA, ZA = 60, 64, 68, 72

        def epi(j):
            ak, av = ACC[j & 1], ACC[j & 1] + 4
            ops = []
            chains = [self.phi_ops(v(ak + r), v(U + r), v(E + r), v(T1 + r), v(M4 + r), v(CSK), v(R4 + r), v(R2 + r), v(ak + r)) for r in range(4)]
            for step in range(6):
                for r in range(4):
                    ops.append(chains[r][step])
                if step == 0:
                    ops += ['v_fma_f32 %s, -%s, %s, %s' % (v(av + r), v(M4 + r), v(CSV), v(av + r)) for r in range(4)]
                if step == 1:
                    ops += ['v_mul_f32 %s, %s, %s' % (v(av + r), v(av + r), v(R4 + r)) for r in range(4)]
            for h in range(2):
                ops.append('v_cvt_pk_bf16_f32 %s, %s, %s' % (v(VP + 2 * (j & 1) + h), v(av + 2 * h), v(av + 2 * h + 1)))
            for h in range(2):
                ops.append('v_cvt_pk_bf16_f32 %s, %s, %s' % (v(PK + 2 * (j & 1) + h), v(ak + 2 * h), v(ak + 2 * h + 1)))
            return ops

        def tabs(j):
            return ['ds_read_b128 %s, v6 offset:%d' % (v(M4, 4), 64 * j),
                    'ds_read_b128 %s, v6 offset:%d' % (v(R4, 4), 512 + 64 * j),
                    'ds_read_b128 %s, v6 offset:%d' % (v(R2, 4), 1024 + 64 * j)]

        def kvm(first):
            return [mf32(v(KVA, 4), v(PK, 4), v(VP, 4), '0' if first else None),
                    mf32(v(ZA, 4), v(PK, 4), v(ONES, 4), '0' if first else None)]

        PF = 3
        for j in range(4):
            g.wait_vm(stage[j])
            g.barrier()
            if j == 0:
                self.stamp('x landed0')
            rd = lambda ks: 'ds_read_b128 %s, v4 offset:%d' % (v(FR + 4 * (ks & 3), 4), 16384 * j + 1024 * ks)
            for ks in range(PF):
                g.I(rd(ks))
            fill = []
            if j:
                fill = tabs(j - 1) + [None] * 3 + epi(j - 1)
            ak, av = ACC[j & 1], ACC[j & 1] + 4
            for ks in range(16):
                fr = v(FR + 4 * (ks & 3), 4)
                g.I(mf32(v(ak, 4), fr, a(4 * ks, 4), '0' if ks == 0 else None))
                for _ in range(2):
                    if fill:
                        i = fill.pop(0)
                        if i:
                            g.I(i)
                g.I(mf32(v(av, 4), fr, a(64 + 4 * ks, 4), '0' if ks == 0 else None))
                if ks + PF < 16:
                    g.I(rd(ks + PF))
                elif fill:
                    g.I(fill.pop(0))
                if fill:
                    i = fill.pop(0)
                    if i:
                        g.I(i)
            for i in fill:
                if i:
                    g.I(i)
            if j == 2:
                for i in kvm(True):
                    g.I(i)
        self.stamp('kv mfma done')
        for i in tabs(3):
            g.I(i)
        rdq = lambda i, ks: 'ds_read_b128 %s, v5 offset:%d' % (v(FR + 4 * (ks & 3), 4), 16384 * i + 1024 * ks)
        for ks in range(PF):
            g.I(rdq(0, ks))
        for i in epi(3):
            g.I(i)
        for i in kvm(False):
            g.I(i)
        g.L('''
        s_lshl_b32 %(t0)s, %(w)s, 11
        s_add_u32 %(t0)s, %(t0)s, %(kvs)d
        v_add_u32 v40, %(t0)s, v1
        s_lshl_b32 %(t0)s, %(hp)s, 4
        s_add_u32 %(t0)s, %(t0)s, %(rg)s
        s_mul_i32 s64, %(t0)s, %(sz)d
        s_add_u32 s64, s64, %(kvp)d
        s_lshl_b32 s65, %(t0)s, 6
        s_add_u32 s65, s65, %(f4)d
        ''' % dict(t0=sT0, w=sW, kvs=L_KVS - 2048, hp=sHP, rg=sRG, sz=KVP_SZ, kvp=WS_KVP + layer * 256 * KVP_SZ,
                   f4=WS_F4 + layer * 256 * 64))
        l1, l2 = self.lab('kv'), self.lab('kv')
        g.I('s_cmp_eq_u32 %s, 0' % sW)
        g.branch('s_cbranch_scc1 ' + l1)
        g.cond_begin()
        g.I('ds_write_b128 v40, %s' % v(KVA, 4))
        g.I('ds_write_b128 v40, %s offset:1024' % v(ZA, 4))
        g.cond_end()
        g.label(l1)
        g.barrier()
        g.I('s_cmp_lg_u32 %s, 0' % sW)
        g.branch('s_cbranch_scc1 ' + l2)
        g.cond_begin()
        S = 40
        g.I('v_add_u32 v86, %d, %s' % (L_KVS, vL16))
        for wv in range(3):
            g.I('ds_read_b128 %s, v86 offset:%d' % (v(S + 8 * wv, 4), 2048 * wv))
            g.I('ds_read_b128 %s, v86 offset:%d' % (v(S + 8 * wv + 4, 4), 2048 * wv + 1024))
        g.I('v_and_b32 v86, 15, %s' % vL)
        g.I('v_cmp_eq_u32 vcc, 0, v86')
        g.I('v_mov_b32 v87, 0x40000000')
        g.I('v_cndmask_b32 v86, v87, %s, vcc' % vL)
        for h in range(4):
            g.I('v_pk_add_f32 %s, %s, %s' % (v(KVA + 2 * h, 2), v(KVA + 2 * h, 2), v(S + 8 + 2 * h, 2)))
            g.I('v_pk_add_f32 %s, %s, %s' % (v(S + 2 * h, 2), v(S + 2 * h, 2), v(S + 16 + 2 * h, 2)))
        g.I('v_cvt_pk_bf16_f32 v64, %s, %s' % (v(KVA), v(KVA + 1)))
        g.I('v_cvt_pk_bf16_f32 v65, %s, %s' % (v(KVA + 2), v(KVA + 3)))
        g.I('v_cvt_pk_bf16_f32 v66, %s, %s' % (v(S), v(S + 1)))
        g.I('v_cvt_pk_bf16_f32 v67, %s, %s' % (v(S + 2), v(S + 3)))
        g.I('buffer_store_dwordx4 v[64:67], %s, %s, s64 offen sc1' % (vL16, WS))
        g.I('buffer_store_dwordx4 %s, v86, %s, s64 offen offset:1024 sc1' % (v(ZA, 4), WS))
        g.I('buffer_store_dwordx4 %s, v86, %s, s64 offen offset:1088 sc1' % (v(S + 4, 4), WS))
        g.cond_end()
        g.label(l2)
        self.stamp('kv stored')
        g.L('''
        v_and_b32 v86, 15, v0
        v_lshlrev_b32 v86, 2, v86
        s_lshl_b32 %(t0)s, %(w)s, 7
        s_add_u32 %(t0)s, %(t0)s, %(tab)d
        v_add_u32 v86, %(t0)s, v86
        ''' % dict(t0=sT0, w=sW, tab=L_TAB))
        QM = 80
        PQ = 60

        def epiq(i):
            ops = []
            for hh in range(2):
                acc = 8 + 8 * i + 4 * hh
                chains = [self.phi_ops(v(acc + r), v(U + r), v(E + r), v(T1 + r), v(QM + 3 * i), v(CSQ + 4 * hh + r),
                                       v(QM + 3 * i + 1), v(QM + 3 * i + 2), v(acc + r)) for r in range(4)]
                for step in range(6):
                    for r in range(4):
                        ops.append(chains[r][step])
                for h in range(2):
                    ops.append('v_cvt_pk_bf16_f32 %s, %s, %s' % (v(PQ + 4 * i + 2 * hh + h), v(acc + 2 * h), v(acc + 2 * h + 1)))
            return ops

        for i in range(2):
            fill = []
            if i == 0:
                for ii in range(2):
                    for k in range(3):
                        fill.append('ds_read_b32 %s, v86 offset:%d' % (v(QM + 3 * ii + k), 512 * k + 64 * ii))
            else:
                fill = [None] * 6 + epiq(0)
            for ks in range(16):
                fr = v(FR + 4 * (ks & 3), 4)
                g.I(mf32(v(8 + 8 * i, 4), a(128 + 4 * ks, 4), fr, '0' if ks == 0 else None))
                for _ in range(2):
                    if fill:
                        x = fill.pop(0)
                        if x:
                            g.I(x)
                g.I(mf32(v(12 + 8 * i, 4), a(192 + 4 * ks, 4), fr, '0' if ks == 0 else None))
                kk = 16 * i + ks + PF
                if kk < 32:
                    g.I(rdq(kk >> 4, kk & 15))
                if fill:
                    x = fill.pop(0)
                    if x:
                        g.I(x)
            rest = [x for x in fill if x]
            if i == 0:
                for x in rest:
                    g.I(x)
                l3 = self.lab('kv')
                g.I('s_cmp_lg_u32 %s, 0' % sW)
                g.branch('s_cbranch_scc1 ' + l3)
                g.cond_begin()
                g.force_wait(vm=0)
                g.I('buffer_store_dword %s, %s, %s, s65 offen sc1' % (vN, vL0, WS))
                g.cond_end()
                g.label(l3)
        for x in rest + epiq(1):
            g.I(x)
        self.stamp('q done')

    def phase_o(self, layer):
        g = self.g
        PQ = 60
        g.L('''
        v_and_b32 v56, 15, v0
        v_lshlrev_b32 v57, 6, v56
        s_lshl_b32 %(t0)s, %(hp)s, 10
        s_add_u32 %(t0)s, %(t0)s, %(f4)d
        s_mul_i32 s64, %(hp)s, %(sz16)d
        s_add_u32 s64, s64, %(kvp)d
        v_mul_u32_u24 v56, %(sz)d, v56
        v_lshrrev_b32 v58, 4, v0
        v_lshl_add_u32 v56, v58, 4, v56
        s_lshl_b32 s66, %(rg)s, 2
        s_add_u32 s66, s66, %(w)s
        s_lshl_b32 s67, s66, 15
        s_lshl_b32 %(t1)s, %(hp)s, 10
        s_add_u32 s67, s67, %(t1)s
        s_add_u32 s67, s67, %(o)d
        s_add_u32 s68, s67, 0x4000
        ''' % dict(t0=sT0, t1=sT1, hp=sHP, rg=sRG, w=sW, f4=WS_F4 + layer * 256 * 64, sz16=16 * KVP_SZ, sz=KVP_SZ,
                   kvp=WS_KVP + layer * 256 * KVP_SZ, o=WS_O + layer * 0x200000))
        self.flag_addr_rb('s69', FK_O + layer, 's66', sHP)
        self.poll_global('v57', sT0, 58)
        self.stamp('kv seen')
        Z, AC = 48, 40
        g.I('buffer_load_dwordx4 %s, v56, %s, s64 offen offset:1024 sc1' % (v(Z, 4), WS))
        g.I('buffer_load_dwordx4 %s, v56, %s, s64 offen offset:1088 sc1' % (v(Z + 4, 4), WS))

        def ld(p):
            if p and p % 3 == 0:
                g.I('s_add_u32 s64, s64, %d' % (3 * KVP_SZ))
            g.I('buffer_load_dwordx4 %s, %s, %s, s64 offen offset:%d sc1' % (v(8 + 4 * (p & 7), 4), vL16, WS, (p % 3) * KVP_SZ))
        for p in range(8):
            ld(p)
        for rot in (8, 4, 2, 1):
            for i in range(8):
                g.I('v_add_f32_dpp %s, %s, %s row_ror:%d row_mask:0xf bank_mask:0xf' % (v(Z + i), v(Z + i), v(Z + i), rot))
        KVB, ZB = 68, 72
        for i in range(4):
            g.I('v_cvt_pk_bf16_f32 %s, %s, %s' % (v(ZB + i), v(Z + 2 * i), v(Z + 2 * i + 1)))
        for p in range(16):
            b = 8 + 4 * (p & 7)
            for d in range(4):
                g.I('v_dot2_f32_bf16 %s, %s, %s, %s' % (v(AC + 2 * d), v(b + d), sE0, '0' if p == 0 else v(AC + 2 * d)))
                g.I('v_dot2_f32_bf16 %s, %s, %s, %s' % (v(AC + 2 * d + 1), v(b + d), sE1, '0' if p == 0 else v(AC + 2 * d + 1)))
            if p + 8 < 16:
                ld(p + 8)
        for i in range(4):
            g.I('v_cvt_pk_bf16_f32 %s, %s, %s' % (v(KVB + i), v(AC + 2 * i), v(AC + 2 * i + 1)))
        self.stamp('kv reduced')
        NUM, DEN, OP = 8, 24, 40
        for i in range(2):
            for hh in range(2):
                k = 2 * i + hh
                g.I(mf16(v(DEN + 4 * k, 4), v(ZB + 2 * hh, 2), v(PQ + 2 * k, 2), '0'))
        for i in range(2):
            for hh in range(2):
                k = 2 * i + hh
                g.I(mf16(v(NUM + 4 * k, 4), v(KVB + 2 * hh, 2), v(PQ + 2 * k, 2), '0'))
        for k in range(4):
            g.I('v_add_f32 %s, %s, %s' % (v(DEN + 4 * k), sEPS6, v(DEN + 4 * k)))
        for k in range(4):
            g.I('v_rcp_f32 %s, %s' % (v(DEN + 4 * k), v(DEN + 4 * k)))
        st = None
        for i in range(2):
            for hh in range(2):
                k = 2 * i + hh
                for h in range(2):
                    g.I('v_pk_mul_f32 %s, %s, %s op_sel_hi:[1,0]' % (v(NUM + 4 * k + 2 * h, 2), v(NUM + 4 * k + 2 * h, 2), v(DEN + 4 * k, 2)))
            for hh in range(2):
                k = 2 * i + hh
                for h in range(2):
                    g.I('v_cvt_pk_bf16_f32 %s, %s, %s' % (v(OP + 4 * i + 2 * hh + h), v(NUM + 4 * k + 2 * h), v(NUM + 4 * k + 2 * h + 1)))
            st = g.I('buffer_store_dwordx4 %s, %s, %s, %s offen' % (v(OP + 4 * i, 4), vL16, WS, 's68' if i else 's67'))
        self.publish_local(st, 's69')
        self.stamp('o published')

    def phase_out(self, layer):
        g = self.g
        g.L('''
        v_and_b32 v40, 3, v0
        v_lshlrev_b32 v40, 2, v40
        s_lshl_b32 %(t0)s, %(w)s, 2
        s_lshl_b32 s64, %(rb)s, 15
        s_lshl_b32 %(t2)s, %(w)s, 12
        s_add_u32 s64, s64, %(t2)s
        s_add_u32 s64, s64, %(o)d
        s_lshl_b32 s65, %(w)s, 15
        v_add_u32 v4, 0x10000, v1
        ''' % dict(t0=sT0, t2=sT2, w=sW, rb=sRB, o=WS_O + layer * 0x200000))
        self.flag_addr_rb(sT1, FK_O + layer, sRB, sT0)
        self.poll_local('v40', sT1, 42)
        self.stamp('o seen')
        self.dma(vL16, WS, 's64', 's65', 4, 'sc1')
        g.I('s_add_u32 s64, s64, 0x4000')
        g.I('s_add_u32 s65, s65, 4096')
        last = self.dma(vL16, WS, 's64', 's65', 4, 'sc1')
        g.wait_vm(last)
        g.barrier()
        self.stamp('o landed')
        FR, PF = 8, 5

        def rd(k):
            hp, rt = k >> 1, k & 1
            return 'ds_read_b128 %s, %s offset:%d' % (v(FR + 4 * (k & 7), 4), 'v4' if hp >= 8 else vL16,
                                                      32768 * ((hp >> 2) & 1) + 4096 * rt + 1024 * (hp & 3))
        for k in range(PF):
            g.I(rd(k))
        for k in range(32):
            hp, rt = k >> 1, k & 1
            for tau in range(2):
                g.I(mf32(v(XR + 8 * rt + 4 * tau, 4), v(WO0 + 64 * tau + 4 * hp, 4), v(FR + 4 * (k & 7), 4)))
            if k + PF < 32:
                g.I(rd(k + PF))
        self.stamp('out done')

    def stats_publish(self, layer):
        g = self.g
        g.I('s_lshl_b32 %s, %s, 2' % (sT2, sCB))
        g.I('s_add_u32 %s, %s, %s' % (sT2, sT2, sW))
        self.flag_addr_rb('s64', FK_S + layer, sRB, sT2)
        self.stats_partial(16)
        st = self.stats_store(16, 2 * layer, 24)
        self.publish_local(st, 's64')
        self.stamp('stats published')

    def finish(self):
        g = self.g
        g.I('v_add_u32 v4, 0x4000, %s' % vXA)
        for rt in range(2):
            for i in range(4):
                x = XR + 8 * rt + 2 * i
                g.I('v_cvt_pk_bf16_f32 %s, %s, %s' % (v(8 + 4 * rt + i), v(x), v(x + 1)))
            g.I('buffer_store_dwordx4 %s, %s, %s, 0 offen' % (v(8 + 4 * rt, 4), 'v4' if rt else vXA, SOUT))
        l1 = self.lab('n')
        g.I('s_or_b32 %s, s2, %s' % (sT0, sW))
        g.I('s_cmp_lg_u32 %s, 0' % sT0)
        g.branch('s_cbranch_scc1 ' + l1)
        g.cond_begin()
        g.I('buffer_store_dword %s, %s, %s, 0 offen sc1' % (vN, vL0, WS))
        g.cond_end()
        g.label(l1)
        if self.stamps:
            g.force_wait(vm=0)
            self.stamp('end')
            g.I('v_writelane_b32 %s, s100, 60' % vSTAMP)
            g.I('s_memrealtime s[100:101]')
            g.I('v_writelane_b32 %s, s100, 61' % vSTAMP)
            g.I('v_writelane_b32 %s, %s, 62' % (vSTAMP, sMODE))
            g.I('s_lshl_b32 %s, s2, 2' % sT0)
            g.I('s_add_u32 %s, %s, %s' % (sT0, sT0, sW))
            g.I('s_lshl_b32 %s, %s, 8' % (sT0, sT0))
            g.I('s_add_u32 %s, %s, %d' % (sT0, sT0, WS_STAMP))
            g.I('v_lshlrev_b32 v4, 2, %s' % vL)
            g.I('buffer_store_dword %s, v4, %s, %s offen' % (vSTAMP, WS, sT0))
        g.label('L_end')
        g.raw('    s_endpgm')

    def build(self):
        self.prologue()
        self.phase_a0()
        self.build_h()
        self.phase_h1()
        self.phase_conv()
        self.phase_h2()
        for layer in range(2):
            if layer:
                self.stats_publish(layer)
            self.phase_e(layer)
            self.phase_gemm(layer)
            self.phase_o(layer)
            self.phase_out(layer)
        self.finish()
        head = open('interleave_layers__ssm_conv_h3__linear_attn_block__prompt.s.ref').read().split('\n') \
            if False else []
        txt = '; @launch grid=(256,1,1) block=(256,1,1) lds=%d\n' % LDS_BYTES
        txt += '''; Persistent fused kernel: 256 workgroups (one per CU), 4 waves each. Generated by work/gen.py (hand-written generator).
.amdgcn_target "amdgcn-amd-amdhsa--gfx950"
.text
.globl %(n)s
.p2align 8
.type %(n)s,@function
%(n)s:
''' % dict(n=NAME)
        txt += self.g.text()
        txt += '''.section .rodata,"a"
.p2align 6
.amdhsa_kernel %(n)s
  .amdhsa_next_free_vgpr 512
  .amdhsa_next_free_sgpr 102
  .amdhsa_accum_offset 256
  .amdhsa_group_segment_fixed_size 0
  .amdhsa_kernarg_size 96
  .amdhsa_user_sgpr_count 2
  .amdhsa_user_sgpr_kernarg_segment_ptr 1
  .amdhsa_system_sgpr_workgroup_id_x 1
.end_amdhsa_kernel
''' % dict(n=NAME)
        return txt


if __name__ == '__main__':
    stamps = '--stamps' in sys.argv
    opts = {}
    if '--slow' in sys.argv:
        opts['force_slow'] = True
    k = K(stamps=stamps, opts=opts)
    t = k.build()
    out = [x for x in sys.argv[1:] if not x.startswith('--')]
    open(out[0] if out else 'k.s', 'w').write(t)
    if stamps:
        open((out[0] if out else 'k.s') + '.stamps', 'w').write('\n'.join(k.stnames))
    print('instructions:', sum(1 for l in t.split('\n') if l.startswith('    ') and not l.strip().startswith(';')),
          'nops', k.g.nnops, 'waits', k.g.nwaits)
```

```python
import sys
from asmgen import Gen, weave

NAME = 'interleave_layers__ssm_conv_h3__linear_attn_block__prompt_kernel'

WS_NONCE = 0x0
WS_FL = 0x1000
FG_OFF = 0x8000
WS_F2 = 0x20000
WS_F4 = 0x30000
WS_KVP = 0x40000
KVP_SZ = 1280
WS_ST = 0x100000
WS_Y = 0x200000
WS_U = 0x400000
WS_X = 0x600000
WS_O = 0xA00000
WS_STAMP = 0xE00000
WS_SIZE = 0x1000000
FK_H1, FK_S, FK_X, FK_O = 0, 1, 3, 5

L_H = 0
HCOPY = 4160
HCH = 4 * HCOPY
L_U = 33280
UCH = 4608
L_SCR = 42496
L_RED = 65536
L_WKV = 98304
L_WQ = 0
L_WO = [32768, 65536, 98304, 131072]
L_TAB = 131072
L_KVS = 131072 + 2048
LDS_BYTES = 163840

WS, SK, SV, SQ, SSH, SH, SW, SWO, SOUT = ['s[%d:%d]' % (4 * i + 4, 4 * i + 7) for i in range(9)]
sX, sR, sW, sNL, sN, sMODE, sRB, sCB, sRG, sHP, sCP, sD0, sD1, sCNT = ['s%d' % i for i in range(44, 58)]
sT0, sT1, sT2, sT3 = 's58', 's59', 's60', 's61'
sM2 = 's[62:63]'
sSELLO, sSELHI, sHI16 = 's88', 's89', 's90'
sC1, sEPS6, sINV512, sEPS5, sLOG2E, sE0, sE1 = 's91', 's92', 's93', 's94', 's95', 's96', 's97'

vL, vL16, vL0, vXA, vNL, vN = 'v0', 'v1', 'v2', 'v3', 'v98', 'v99'
vSTAMP = 'v7'
CSQ, CSK, CSV, ONES, YPK, XR = 88, 96, 97, 100, 104, 112
WO0 = 128


def v(i, n=1):
    return 'v%d' % i if n == 1 else 'v[%d:%d]' % (i, i + n - 1)


def a(i, n=1):
    return 'a%d' % i if n == 1 else 'a[%d:%d]' % (i, i + n - 1)


def mf32(d, x, y, c=None):
    return 'v_mfma_f32_16x16x32_bf16 %s, %s, %s, %s' % (d, x, y, d if c is None else c)


def mf16(d, x, y, c=None):
    return 'v_mfma_f32_16x16x16_bf16 %s, %s, %s, %s' % (d, x, y, d if c is None else c)


class K:
    def __init__(self, stamps=False, opts=None):
        self.g = Gen()
        self.stamps = stamps
        self.nst = 0
        self.stnames = []
        self.nlab = 0
        self.o = dict(force_slow=False, h1_timeout=600, spin_max=400000)
        self.o.update(opts or {})

    def lab(self, p):
        self.nlab += 1
        return 'L_%s%d' % (p, self.nlab)

    def stamp(self, name):
        if not self.stamps:
            return
        g = self.g
        g.I('s_memtime s[98:99]')
        g.I('v_writelane_b32 %s, s98, %d' % (vSTAMP, self.nst))
        self.stnames.append(name)
        self.nst += 1

    def publish_local(self, last_store, s_addr):
        g = self.g
        g.wait_vm(last_store)
        skip = self.lab('pf')
        g.I('s_cmp_eq_u32 %s, 0' % sMODE)
        g.branch('s_cbranch_scc1 ' + skip)
        g.cond_begin()
        g.I('buffer_wbl2 sc1')
        g.force_wait(vm=0)
        g.I('s_add_u32 %s, %s, %d' % (sT3, s_addr, FG_OFF))
        g.I('buffer_store_dword %s, %s, %s, %s offen sc1' % (vN, vL0, WS, sT3))
        g.force_wait(vm=0)
        g.cond_end()
        g.label(skip)
        g.I('buffer_store_dword %s, %s, %s, %s offen' % (vNL, vL0, WS, s_addr))

    def publish_global(self, last_store, s_addr):
        g = self.g
        g.wait_vm(last_store)
        g.I('buffer_store_dword %s, %s, %s, %s offen sc1' % (vN, vL0, WS, s_addr))

    def poll_global(self, v_addr, s_off, vt):
        g = self.g
        top, done = self.lab('pg'), self.lab('pd')
        g.I('s_mov_b32 %s, 0' % sCNT)
        g.label(top)
        g.I('buffer_load_dword %s, %s, %s, %s offen sc1' % (v(vt), v_addr, WS, s_off))
        g.I('s_add_u32 %s, %s, 1' % (sCNT, sCNT))
        g.force_wait(vm=0)
        g.I('v_cmp_ne_u32 vcc, %s, %s' % (sN, v(vt)))
        g.I('s_cmp_gt_u32 %s, %d' % (sCNT, self.o['spin_max']))
        g.branch('s_cbranch_scc1 ' + done)
        g.branch('s_cbranch_vccnz ' + top)
        g.label(done)

    def poll_local(self, v_addr, s_off, vt, wide=False, h1_flag=None):
        g = self.g
        top, done, slow, fin = self.lab('pl'), self.lab('pd'), self.lab('ps'), self.lab('pe')
        n = 2 if wide else 1
        ld = 'buffer_load_dwordx2' if wide else 'buffer_load_dword'
        g.I('s_mov_b32 %s, 0' % sCNT)
        g.label(top)
        g.I('%s %s, %s, %s, %s offen sc1' % (ld, v(vt, n), v_addr, WS, s_off))
        g.I('s_add_u32 %s, %s, 1' % (sCNT, sCNT))
        g.force_wait(vm=0)
        if wide:
            g.I('v_xor_b32 %s, %s, %s' % (v(vt), sNL, v(vt)))
            g.I('v_xor_b32 %s, %s, %s' % (v(vt + 1), sNL, v(vt + 1)))
            g.I('v_or_b32 %s, %s, %s' % (v(vt + 4), v(vt), v(vt + 1)))
            g.I('v_cmp_ne_u32 vcc, 0, %s' % v(vt + 4))
        else:
            g.I('v_cmp_ne_u32 vcc, %s, %s' % (sNL, v(vt)))
        g.I('s_cmp_lg_u32 %s, 0' % sMODE)
        g.branch('s_cbranch_scc1 ' + slow)
        g.branch('s_cbranch_vccz ' + fin)
        g.I('s_cmp_lt_u32 %s, %d' % (sCNT, self.o['h1_timeout'] if h1_flag else self.o['spin_max']))
        g.branch('s_cbranch_scc1 ' + top)
        if h1_flag:
            g.I('s_mov_b32 %s, 1' % sMODE)
            g.I('buffer_wbl2 sc1')
            g.force_wait(vm=0)
            g.I('s_add_u32 %s, %s, %d' % (sT3, h1_flag, FG_OFF))
            g.I('buffer_store_dword %s, %s, %s, %s offen sc1' % (vN, vL0, WS, sT3))
            g.force_wait(vm=0)
            g.branch('s_branch ' + top)
        else:
            g.branch('s_branch ' + fin)
        g.label(slow)
        g.I('s_add_u32 %s, %s, %d' % (sT3, s_off, FG_OFF))
        g.I('%s %s, %s, %s, %s offen sc1' % (ld, v(vt + 2, n), v_addr, WS, sT3))
        g.force_wait(vm=0)
        if wide:
            g.I('v_xor_b32 %s, %s, %s' % (v(vt + 2), sN, v(vt + 2)))
            g.I('v_xor_b32 %s, %s, %s' % (v(vt + 3), sN, v(vt + 3)))
            g.I('v_min_u32 %s, %s, %s' % (v(vt), v(vt), v(vt + 2)))
            g.I('v_min_u32 %s, %s, %s' % (v(vt + 1), v(vt + 1), v(vt + 3)))
            g.I('v_or_b32 %s, %s, %s' % (v(vt + 4), v(vt), v(vt + 1)))
            g.I('v_cmp_ne_u32 vcc, 0, %s' % v(vt + 4))
        else:
            g.I('v_cmp_ne_u32 %s, %s, %s' % (sM2, sN, v(vt + 2)))
            g.I('s_and_b64 vcc, vcc, %s' % sM2)
        g.I('s_cmp_gt_u32 %s, %d' % (sCNT, self.o['spin_max']))
        g.branch('s_cbranch_scc1 ' + done)
        g.branch('s_cbranch_vccnz ' + top)
        g.label(done)
        g.I('buffer_inv sc1')
        g.force_wait(vm=0)
        g.label(fin)

    def dma(self, v_addr, srd, s_off, lds_s, n, sc='', step=1024):
        g = self.g
        last = None
        for i in range(n):
            if i % 4 == 0:
                if i:
                    g.I('s_add_u32 %s, %s, 4096' % (lds_s, lds_s))
                    g.I('s_add_u32 %s, %s, 4096' % (s_off, s_off))
                g.I('s_mov_b32 m0, %s' % lds_s)
            last = g.I('buffer_load_dwordx4 %s, %s, %s offen offset:%d %s lds' % (v_addr, srd, s_off, (i % 4) * 1024, sc))
        return last

    def dma_rows(self, v_addr, srd, s_off, lds_s, n, gstep):
        g = self.g
        last = None
        for i in range(n):
            g.I('s_mov_b32 m0, %s' % lds_s)
            if i + 1 < n:
                g.I('s_add_u32 %s, %s, 1024' % (lds_s, lds_s))
            last = g.I('buffer_load_dwordx4 %s, %s, %s offen lds' % (v_addr, srd, s_off))
            if i + 1 < n:
                g.I('s_add_u32 %s, %s, %d' % (s_off, s_off, gstep))
        return last

    def stats_partial(self, t):
        g = self.g
        for rt in range(2):
            x = XR + 8 * rt
            s, q = t + 4 * rt, t + 4 * rt + 2
            g.I('v_pk_add_f32 %s, %s, %s' % (v(s, 2), v(x, 2), v(x + 2, 2)))
            g.I('v_pk_mul_f32 %s, %s, %s' % (v(q, 2), v(x, 2), v(x, 2)))
            g.I('v_pk_add_f32 %s, %s, %s' % (v(s, 2), v(s, 2), v(x + 4, 2)))
            g.I('v_pk_fma_f32 %s, %s, %s, %s' % (v(q, 2), v(x + 2, 2), v(x + 2, 2), v(q, 2)))
            g.I('v_pk_add_f32 %s, %s, %s' % (v(s, 2), v(s, 2), v(x + 6, 2)))
            g.I('v_pk_fma_f32 %s, %s, %s, %s' % (v(q, 2), v(x + 4, 2), v(x + 4, 2), v(q, 2)))
            g.I('v_pk_fma_f32 %s, %s, %s, %s' % (v(q, 2), v(x + 6, 2), v(x + 6, 2), v(q, 2)))
        s0, q0, s1, q1 = t, t + 2, t + 4, t + 6
        for r in (s0, q0, s1, q1):
            g.I('v_add_f32 %s, %s, %s' % (v(r), v(r), v(r + 1)))
        g.I('v_permlane32_swap_b32 %s, %s' % (v(s0), v(q0)))
        g.I('v_permlane32_swap_b32 %s, %s' % (v(s1), v(q1)))
        g.I('v_add_f32 %s, %s, %s' % (v(s0), v(s0), v(q0)))
        g.I('v_add_f32 %s, %s, %s' % (v(s1), v(s1), v(q1)))
        g.I('v_permlane16_swap_b32 %s, %s' % (v(s0), v(s1)))
        g.I('v_add_f32 %s, %s, %s' % (v(t), v(s0), v(s1)))

    def stats_store(self, t, which, vt):
        g = self.g
        g.I('s_lshl_b32 %s, %s, 12' % (sT0, sRB))
        g.I('s_lshl_b32 %s, %s, 4' % (sT1, sCB))
        g.I('s_add_u32 %s, %s, %s' % (sT0, sT0, sT1))
        g.I('s_lshl_b32 %s, %s, 2' % (sT1, sW))
        g.I('s_add_u32 %s, %s, %s' % (sT0, sT0, sT1))
        g.I('s_add_u32 %s, %s, %d' % (sT0, sT0, WS_ST + which * 0x40000))
        g.I('v_lshlrev_b32 %s, 6, %s' % (v(vt), vL))
        return g.I('buffer_store_dword %s, %s, %s, %s offen' % (v(t), v(vt), WS, sT0))

    def stats_load(self, s_rb, which, t, vt):
        g = self.g
        g.I('s_lshl_b32 %s, %s, 12' % (sT0, s_rb))
        g.I('s_add_u32 %s, %s, %d' % (sT0, sT0, WS_ST + which * 0x40000))
        g.I('v_lshlrev_b32 %s, 6, %s' % (v(vt), vL))
        for i in range(4):
            g.I('buffer_load_dwordx4 %s, %s, %s, %s offen offset:%d sc1' % (v(t + 4 * i, 4), v(vt), WS, sT0, 16 * i))

    def stats_finish(self, t):
        g = self.g
        for i in range(4):
            g.I('v_pk_add_f32 %s, %s, %s' % (v(t + 4 * i, 2), v(t + 4 * i, 2), v(t + 4 * i + 2, 2)))
        g.I('v_pk_add_f32 %s, %s, %s' % (v(t, 2), v(t, 2), v(t + 4, 2)))
        g.I('v_pk_add_f32 %s, %s, %s' % (v(t + 8, 2), v(t + 8, 2), v(t + 12, 2)))
        g.I('v_pk_add_f32 %s, %s, %s' % (v(t, 2), v(t, 2), v(t + 8, 2)))
        g.I('v_add_f32 %s, %s, %s' % (v(t), v(t), v(t + 1)))
        g.I('v_mul_f32 %s, %s, %s' % (v(t), sINV512, v(t)))
        g.I('v_mov_b32 %s, %s' % (v(t + 1), v(t)))
        g.I('v_permlane32_swap_b32 %s, %s' % (v(t), v(t + 1)))
        g.I('v_fma_f32 %s, -%s, %s, %s' % (v(t + 1), v(t), v(t), v(t + 1)))
        g.I('v_max_f32 %s, 0, %s' % (v(t + 1), v(t + 1)))
        g.I('v_add_f32 %s, %s, %s' % (v(t + 1), sEPS5, v(t + 1)))
        g.I('v_rsq_f32 %s, %s' % (v(t + 1), v(t + 1)))

    def flag_addr_rb(self, dst, kind, s_rb, s_idx):
        g = self.g
        g.I('s_lshl_b32 %s, %s, 4' % (dst, s_rb))
        g.I('s_add_u32 %s, %s, %s' % (dst, dst, s_idx))
        g.I('s_lshl_b32 %s, %s, 2' % (dst, dst))
        g.I('s_add_u32 %s, %s, %d' % (dst, dst, WS_FL + kind * 4096))

    def prologue(self):
        g = self.g
        g.I('s_cmp_ge_u32 s2, 256')
        g.branch('s_cbranch_scc1 L_end')
        if self.stamps:
            g.I('s_memrealtime s[100:101]')
        g.I('s_load_dwordx16 s[64:79], s[0:1], 0')
        g.I('s_load_dwordx8 s[80:87], s[0:1], 64')
        g.L('''
        s_and_b32 %(x)s, s2, 7
        s_lshr_b32 %(r)s, s2, 3
        v_lshrrev_b32 v4, 6, v0
        v_and_b32 v5, 7, v0
        v_readfirstlane_b32 %(w)s, v4
        v_lshrrev_b32 v6, 3, v0
        s_lshl_b32 %(t0)s, %(r)s, 16
        s_lshl_b32 %(t1)s, %(x)s, 7
        s_add_u32 %(t0)s, %(t0)s, %(t1)s
        v_lshlrev_b32 v6, 11, v6
        v_lshl_add_u32 v6, v5, 4, v6
        v_add_u32 v76, %(t0)s, v6
        v_add_u32 v77, 0xfffffc00, v76
        v_add_u32 v78, 0xfffff800, v76
        v_add_u32 v79, 0xfffff400, v76
        s_lshl_b32 %(t1)s, %(x)s, 9
        v_lshlrev_b32 v5, 6, v5
        v_add_u32 v80, %(t1)s, v5
        v_lshlrev_b32 v81, 4, v0
        s_lshl_b32 %(cp)s, %(x)s, 5
        s_add_u32 %(cp)s, %(cp)s, %(r)s
        s_lshr_b32 %(t0)s, %(r)s, 2
        s_lshl_b32 %(rb)s, %(x)s, 3
        s_add_u32 %(rb)s, %(rb)s, %(t0)s
        s_and_b32 %(cb)s, %(r)s, 3
        s_lshr_b32 %(rg)s, %(rb)s, 2
        s_and_b32 %(hp)s, %(r)s, 15
        s_mov_b32 %(mode)s, %(m0)d
        v_and_b32 v0, 63, v0
        v_lshlrev_b32 v1, 4, v0
        v_mov_b32 v2, 0x40000000
        v_cmp_eq_u32 vcc, 0, v0
        s_mov_b32 s11, 0x20000
        s_mov_b32 s15, 0x20000
        s_mov_b32 s10, 0x200000
        s_mov_b32 s14, 0x200000
        v_cndmask_b32 v2, v2, v0, vcc
        ''' % dict(x=sX, r=sR, w=sW, t0=sT0, t1=sT1, cp=sCP, rb=sRB, cb=sCB, rg=sRG, hp=sHP, mode=sMODE,
                   m0=1 if self.o['force_slow'] else 0))
        if self.stamps:
            g.I('v_mov_b32 %s, 0' % vSTAMP)
        if self.o.get('probe'):
            base, off, cnt = self.o['probe']
            g.L('''
            s_mov_b32 s40, s%d
            s_mov_b32 s41, s%d
            s_mov_b32 s42, 0x10000000
            s_mov_b32 s43, 0x20000
            s_lshl_b32 s3, s2, 13
            s_add_u32 s3, s3, %d
            v_mov_b32 v90, 0
            ''' % (base, base + 1, off))
            for i in range(cnt):
                g.I('buffer_load_dword v91, v90, s[40:43], s3 offen offset:%d' % (128 * i))
                g.I('v_and_b32 v90, 0, v91')
        g.L('''
        s_mov_b32 s8, s66
        s_mov_b32 s9, s67
        s_mov_b32 s12, s68
        s_mov_b32 s13, s69
        ''')
        R = [8, 12, 16, 20, 24]
        g.I('buffer_load_dwordx4 %s, v76, %s, 0 offen' % (v(R[3], 4), SK))
        g.I('buffer_load_dwordx4 %s, v76, %s, 0 offen offset:1024' % (v(R[4], 4), SK))
        g.I('buffer_load_dwordx4 %s, v76, %s, 0 offen' % (v(28, 4), SV))
        g.I('buffer_load_dwordx4 %s, v76, %s, 0 offen offset:1024' % (v(32, 4), SV))
        g.L('''
        s_mov_b32 s20, s70
        s_mov_b32 s21, s71
        s_mov_b32 s22, 4096
        s_mov_b32 s23, 0x20000
        s_mov_b32 s4, s86
        s_mov_b32 s5, s87
        s_mov_b32 s6, %d
        s_mov_b32 s7, 0x20000
        ''' % WS_SIZE)
        for i in range(4):
            g.I('buffer_load_dwordx4 %s, v80, %s, 0 offen offset:%d' % (v(36 + 4 * i, 4), SSH, 16 * i))
        g.I('buffer_load_dwordx4 %s, v77, %s, 0 offen' % (v(R[2], 4), SK))
        g.I('buffer_load_dwordx4 %s, v78, %s, 0 offen' % (v(R[1], 4), SK))
        g.I('buffer_load_dwordx4 %s, v79, %s, 0 offen' % (v(R[0], 4), SK))
        g.I('buffer_load_dword v82, off, %s, 0 sc1' % WS)
        g.L('''
        s_mov_b32 s16, s64
        s_mov_b32 s17, s65
        s_mov_b32 s18, 0x200000
        s_mov_b32 s19, 0x20000
        s_mov_b32 s24, s72
        s_mov_b32 s25, s73
        s_mov_b32 s26, 0x200000
        s_mov_b32 s27, 0x20000
        s_mov_b32 s28, s78
        s_mov_b32 s29, s79
        s_mov_b32 s30, 0x180000
        s_mov_b32 s31, 0x20000
        s_mov_b32 s32, s80
        s_mov_b32 s33, s81
        s_mov_b32 s34, 0x80000
        s_mov_b32 s35, 0x20000
        s_mov_b32 s36, s82
        s_mov_b32 s37, s83
        s_mov_b32 s38, 0x200000
        s_mov_b32 s39, 0x20000
        ''')
        g.I('v_lshlrev_b32 v83, 7, %s' % vL)
        g.I('s_lshl_b32 %s, %s, 13' % (sT0, sCP))
        g.I('s_mov_b32 %s, %d' % (sT1, WS_U))
        g.I('s_cmp_eq_u32 %s, 1' % sW)
        g.I('s_cselect_b32 %s, %d, %s' % (sT1, WS_X, sT1))
        g.I('s_cmp_eq_u32 %s, 2' % sW)
        g.I('s_cselect_b32 %s, %d, %s' % (sT1, WS_O, sT1))
        g.I('s_cmp_eq_u32 %s, 3' % sW)
        g.I('s_cselect_b32 %s, %d, %s' % (sT1, WS_X + 0x200000, sT1))
        g.I('s_add_u32 %s, %s, %s' % (sT1, sT1, sT0))
        g.I('buffer_load_dword v84, v83, %s, %s offen' % (WS, sT1))
        g.I('s_lshl_b32 %s, %s, 13' % (sT1, sCP))
        for ch in range(2):
            if ch:
                g.I('s_add_u32 %s, %s, 4096' % (sT1, sT1))
            for j in range(3):
                g.I('buffer_load_dwordx4 %s, v81, %s, %s offen offset:%d' % (v(52 + 12 * ch + 4 * j, 4), SH, sT1, 4 * j))
        g.I('s_lshl_b32 %s, %s, 2' % (sT1, sCP))
        g.I('s_load_dword %s, s[74:75], %s' % (sD0, sT1))
        g.I('s_add_u32 %s, %s, %d' % (sT1, sT0, WS_O + 0x200000))
        g.I('v_lshlrev_b32 v85, 7, %s' % vL)
        g.I('s_cmp_eq_u32 %s, 0' % sW)
        skip = self.lab('t')
        g.branch('s_cbranch_scc1 ' + skip)
        g.L('''
        v_lshrrev_b32 v86, 3, v0
        v_and_b32 v87, 7, v0
        v_lshlrev_b32 v85, 18, v86
        v_lshl_add_u32 v85, v87, 7, v85
        s_lshl_b32 %(t1)s, %(cp)s, 10
        s_add_u32 %(t1)s, %(t1)s, %(st)d
        v_add_u32 v85, %(t1)s, v85
        v_lshrrev_b32 v86, 2, v0
        v_and_b32 v86, 7, v86
        v_and_b32 v87, 3, v0
        v_lshlrev_b32 v86, 12, v86
        v_lshl_add_u32 v86, v87, 7, v86
        s_lshl_b32 %(t1)s, %(x)s, 9
        s_add_u32 %(t1)s, %(t1)s, %(fl)d
        v_add_u32 v86, %(t1)s, v86
        v_cmp_gt_u32 vcc, 32, v0
        s_mov_b32 %(t1)s, 0
        v_cndmask_b32 v85, v86, v85, vcc
        ''' % dict(t1=sT1, cp=sCP, x=sX, st=WS_ST, fl=WS_FL))
        g.label(skip)
        g.I('buffer_load_dword v84, v85, %s, %s offen' % (WS, sT1))
        g.I('s_getpc_b64 s[62:63]')
        g.I('s_lshl_b32 %s, %s, 13' % (sT1, sW))
        g.I('v_add_u32 v83, %s, v83' % sT1)
        g.I('v_min_u32 v83, L_end-L_pc-4, v83')
        g.raw('L_pc:')
        g.I('global_load_dword v87, v83, s[62:63]')
        g.L('''
        s_mov_b32 %s, 0x05040100
        s_mov_b32 %s, 0x07060302
        s_mov_b32 %s, 0xffff0000
        s_mov_b32 %s, 0x3f800008
        s_mov_b32 %s, 0x358637bd
        s_mov_b32 %s, 0x3b000000
        s_mov_b32 %s, 0x3727c5ac
        s_mov_b32 %s, 0x3fb8aa3b
        s_mov_b32 %s, 0x00003f80
        s_mov_b32 %s, 0x3f800000
        ''' % (sSELLO, sSELHI, sHI16, sC1, sEPS6, sINV512, sEPS5, sLOG2E, sE0, sE1))
        for i in range(4):
            g.I('v_mov_b32 %s, 0x3f803f80' % v(ONES + i))
        g.L('''
        v_and_b32 v4, 15, v0
        v_lshrrev_b32 v5, 4, v0
        v_lshlrev_b32 v3, 10, v4
        v_lshl_add_u32 v3, v5, 4, v3
        s_lshl_b32 %(t0)s, %(rb)s, 15
        s_lshl_b32 %(t1)s, %(cb)s, 8
        s_add_u32 %(t0)s, %(t0)s, %(t1)s
        s_lshl_b32 %(t1)s, %(w)s, 6
        s_add_u32 %(t0)s, %(t0)s, %(t1)s
        v_add_u32 v3, %(t0)s, v3
        s_getreg_b32 %(t2)s, hwreg(HW_REG_XCC_ID, 0, 4)
        ''' % dict(t0=sT0, t1=sT1, t2=sT2, rb=sRB, cb=sCB, w=sW))
        self.stamp('prologue')

    def phase_a0(self):
        g = self.g
        R = [8, 12, 16, 20, 24]
        V = [28, 32]
        SHR = 36
        T = 128
        OUT = 160
        g.L('''
        v_lshrrev_b32 v176, 3, v0
        v_and_b32 v177, 7, v0
        v_lshlrev_b32 v176, 8, v176
        v_lshl_add_u32 v176, v177, 4, v176
        s_lshl_b32 %(t0)s, %(w)s, 11
        s_add_u32 %(t0)s, %(t0)s, %(scr)d
        v_add_u32 v176, %(t0)s, v176
        v_lshrrev_b32 v177, 4, v0
        v_and_b32 v178, 1, v177
        v_lshrrev_b32 v179, 1, v177
        v_bfe_u32 v180, v0, 2, 2
        v_and_b32 v181, 3, v0
        v_lshl_add_u32 v180, v178, 3, v180
        v_sub_u32 v180, 11, v180
        v_lshlrev_b32 v180, 7, v180
        v_lshl_add_u32 v180, v179, 5, v180
        v_lshl_add_u32 v180, v181, 3, v180
        v_add_u32 v180, %(t0)s, v180
        v_and_b32 v181, 15, v0
        v_lshrrev_b32 v182, 1, v181
        v_lshl_add_u32 v182, v179, 3, v182
        v_lshlrev_b32 v182, 13, v182
        v_and_b32 v181, 1, v181
        v_lshl_add_u32 v182, v181, 5, v182
        v_lshl_add_u32 v182, v178, 4, v182
        ''' % dict(t0=sT0, w=sW, scr=L_SCR))
        for c in range(8):
            d, sel = c >> 1, (sSELHI if c & 1 else sSELLO)
            for i in range(4):
                g.I('v_perm_b32 %s, %s, %s, %s' % (v(T + 4 * c + i), v(R[i] + d), v(R[i + 1] + d), sel))
        for c in range(8):
            w01, w23 = SHR + 2 * c, SHR + 2 * c + 1
            g.I('v_dot2_f32_bf16 %s, %s, %s, 0' % (v(OUT + c), v(T + 4 * c + 2), v(w01)))
            g.I('v_dot2_f32_bf16 %s, %s, %s, 0' % (v(OUT + 8 + c), v(T + 4 * c + 3), v(w01)))
        for c in range(8):
            w01, w23 = SHR + 2 * c, SHR + 2 * c + 1
            g.I('v_dot2_f32_bf16 %s, %s, %s, %s' % (v(OUT + c), v(T + 4 * c + 0), v(w23), v(OUT + c)))
            g.I('v_dot2_f32_bf16 %s, %s, %s, %s' % (v(OUT + 8 + c), v(T + 4 * c + 1), v(w23), v(OUT + 8 + c)))
        for row in range(2):
            for d in range(4):
                g.I('v_lshlrev_b32 %s, 16, %s' % (v(T + 8 * row + 2 * d), v(V[row] + d)))
                g.I('v_and_b32 %s, %s, %s' % (v(T + 8 * row + 2 * d + 1), sHI16, v(V[row] + d)))
        for i in range(8):
            g.I('v_pk_mul_f32 %s, %s, %s' % (v(OUT + 2 * i, 2), v(OUT + 2 * i, 2), v(T + 2 * i, 2)))
        for i in range(8):
            g.I('v_cvt_pk_bf16_f32 %s, %s, %s' % (v(T + 16 + i), v(OUT + 2 * i), v(OUT + 2 * i + 1)))
        g.I('ds_write_b128 v176, %s' % v(T + 16, 4))
        g.I('ds_write_b128 v176, %s offset:128' % v(T + 20, 4))
        g.I('v_readfirstlane_b32 %s, v82' % sN)
        g.I('s_mul_i32 %s, %s, 0x9e3779b1' % (sN, sN))
        g.I('s_add_u32 %s, %s, 0x7f4a7c15' % (sN, sN))
        g.I('s_xor_b32 %s, %s, %s' % (sNL, sN, sT2))
        g.I('v_mov_b32 %s, %s' % (vN, sN))
        g.I('v_mov_b32 %s, %s' % (vNL, sNL))
        g.wait_lg()
        for j in range(2):
            g.I('ds_read_b64_tr_b16 %s, v180 offset:%d' % (v(T + 4 * j, 2), 512 + 64 * j))
            g.I('ds_read_b64_tr_b16 %s, v180 offset:%d' % (v(T + 4 * j + 2, 2), 64 * j))
        g.L('''
        s_lshl_b32 %(t0)s, %(x)s, 18
        s_lshl_b32 %(t1)s, %(r)s, 8
        s_add_u32 %(t0)s, %(t0)s, %(t1)s
        s_lshl_b32 %(t1)s, %(w)s, 6
        s_add_u32 %(t0)s, %(t0)s, %(t1)s
        s_add_u32 %(t0)s, %(t0)s, %(u)d
        s_add_u32 %(t1)s, %(t0)s, 0x20000
        ''' % dict(t0=sT0, t1=sT1, x=sX, r=sR, w=sW, u=WS_U))
        g.I('buffer_store_dwordx4 %s, v182, %s, %s offen' % (v(T, 4), WS, sT0))
        st = g.I('buffer_store_dwordx4 %s, v182, %s, %s offen' % (v(T + 4, 4), WS, sT1))
        self.stamp('a0 stores')
        g.L('''
        s_lshl_b32 %(t1)s, %(r)s, 2
        s_add_u32 %(t1)s, %(t1)s, %(w)s
        s_lshl_b32 %(t1)s, %(t1)s, 2
        s_lshl_b32 %(t0)s, %(x)s, 9
        s_add_u32 %(t0)s, %(t0)s, %(fl)d
        s_add_u32 %(t1)s, %(t1)s, %(t0)s
        ''' % dict(t0=sT0, t1=sT1, x=sX, r=sR, w=sW, fl=WS_FL + FK_H1 * 4096))
        self.publish_local(st, sT1)
        self.stamp('h1 published')

    def build_h(self):
        g = self.g
        T = 128
        g.I('v_add_u32 v81, %d, v81' % (L_H + 32))
        for ch in range(2):
            La, Lb, Lc = 52 + 12 * ch, 56 + 12 * ch, 60 + 12 * ch
            for k in range(4):
                g.I('v_alignbit_b32 %s, %s, %s, 16' % (v(T + 8 * ch + k), v(Lb + k), v(La + k)))
                g.I('v_alignbit_b32 %s, %s, %s, 16' % (v(T + 8 * ch + 4 + k), v(Lc + k), v(Lb + k)))
            for rho, src in enumerate((La, T + 8 * ch, Lb, T + 8 * ch + 4)):
                g.I('ds_write_b128 v81, %s offset:%d' % (v(src, 4), ch * HCH + rho * HCOPY))
        for i in range(4):
            g.I('v_mov_b32 %s, 0' % v(T + 16 + i))
        l1, l2 = self.lab('h'), self.lab('h')
        g.I('s_cmp_lg_u32 %s, 0' % sW)
        g.branch('s_cbranch_scc1 ' + l1)
        g.cond_begin()
        g.I('s_mov_b64 exec, 1')
        Z = T + 16
        for ch in range(2):
            La = 52 + 12 * ch
            b = T + 20 + 12 * ch
            for i in range(12):
                g.I('v_mov_b32 %s, 0' % v(b + i))
            g.I('v_lshlrev_b32 %s, 16, %s' % (v(b + 3), v(La)))
            g.I('v_mov_b32 %s, %s' % (v(b + 7), v(La)))
            g.I('v_lshlrev_b32 %s, 16, %s' % (v(b + 10), v(La)))
            g.I('v_alignbit_b32 %s, %s, %s, 16' % (v(b + 11), v(La + 1), v(La)))
            for rho in range(4):
                g.I('ds_write_b128 %s, %s offset:%d' % (vL16, v(Z, 4), L_H + ch * HCH + rho * HCOPY))
                src = Z if rho == 0 else b + 4 * (rho - 1)
                g.I('ds_write_b128 %s, %s offset:%d' % (vL16, v(src, 4), L_H + ch * HCH + rho * HCOPY + 16))
        g.I('s_mov_b64 exec, -1')
        g.cond_end()
        g.label(l1)
        g.I('s_cmp_lg_u32 %s, 1' % sW)
        g.branch('s_cbranch_scc1 ' + l2)
        g.cond_begin()
        g.I('v_lshrrev_b32 %s, 5, %s' % (v(T + 20), vL))
        g.I('v_and_b32 %s, 31, %s' % (v(T + 21), vL))
        g.I('v_mul_u32_u24 %s, %d, %s' % (v(T + 20), UCH, v(T + 20)))
        g.I('v_lshl_add_u32 %s, %s, 4, %s' % (v(T + 20), v(T + 21), v(T + 20)))
        g.I('ds_write_b128 %s, %s offset:%d' % (v(T + 20), v(Z, 4), L_U + 4096))
        g.cond_end()
        g.label(l2)

    def phase_h1(self):
        g = self.g
        g.L('''
        v_lshrrev_b32 v8, 1, v0
        v_sub_u32 v8, 31, v8
        v_lshlrev_b32 v8, 6, v8
        v_and_b32 v9, 1, v0
        v_lshl_add_u32 v8, v9, 4, v8
        v_lshlrev_b32 v9, 3, v0
        ''')
        g.L('''
        v_lshrrev_b32 v10, 2, v0
        v_mul_u32_u24 v10, 3072, v10
        v_lshrrev_b32 v11, 4, v0
        v_and_b32 v11, 2, v11
        v_and_b32 v12, 3, v0
        v_xor_b32 v11, v11, v12
        v_lshl_add_u32 v6, v11, 4, v10
        v_add_u32 v13, 0x4000, v3
        ''')
        g.I('s_mov_b32 %s, %s' % (sT2, sT1))
        self.poll_local('v9', sT0, 14, wide=True, h1_flag=sT2)
        self.stamp('h1 seen')
        g.L('''
        s_lshl_b32 %(t0)s, %(cp)s, 13
        s_add_u32 %(t0)s, %(t0)s, %(u)d
        s_and_b32 %(t1)s, %(w)s, 1
        s_lshl_b32 %(t2)s, %(t1)s, 5
        s_add_u32 %(t0)s, %(t0)s, %(t2)s
        s_mul_i32 %(t1)s, %(t1)s, %(uch)d
        s_lshr_b32 %(t2)s, %(w)s, 1
        s_lshl_b32 %(t3)s, %(t2)s, 11
        s_add_u32 %(t1)s, %(t1)s, %(t3)s
        s_add_u32 %(t1)s, %(t1)s, %(lu)d
        s_lshl_b32 %(t2)s, %(t2)s, 12
        s_sub_u32 %(t0)s, %(t0)s, %(t2)s
        s_add_u32 %(t0)s, %(t0)s, 6144
        s_mov_b32 m0, %(t1)s
        ''' % dict(t0=sT0, t1=sT1, t2=sT2, t3=sT3, cp=sCP, w=sW, u=WS_U, uch=UCH, lu=L_U))
        g.I('buffer_load_dwordx4 v8, %s, %s offen sc1 lds' % (WS, sT0))
        g.I('s_add_u32 m0, %s, 1024' % sT1)
        g.I('s_sub_u32 %s, %s, 2048' % (sT0, sT0))
        ud = g.I('buffer_load_dwordx4 v8, %s, %s offen sc1 lds' % (WS, sT0))
        g.I('buffer_load_dwordx4 %s, v3, %s, 0 offen' % (v(YPK, 4), SQ))
        g.I('buffer_load_dwordx4 %s, v13, %s, 0 offen' % (v(YPK + 4, 4), SQ))
        for p in range(2):
            g.I('s_mul_i32 %s, %s, %d' % (sT0, sW, 128 * 3072))
            g.I('s_lshl_b32 %s, %s, 6' % (sT1, sHP))
            g.I('s_add_u32 %s, %s, %s' % (sT0, sT0, sT1))
            g.I('s_add_u32 %s, %s, %d' % (sT0, sT0, 1024 * (p + 1)))
            g.I('s_lshl_b32 %s, %s, 13' % (sT1, sW))
            g.I('s_add_u32 %s, %s, %d' % (sT1, sT1, L_WKV + 32768 * p))
            self.wkv_last = self.dma_rows('v6', SW, sT0, sT1, 8, 16 * 3072)
        g.L('''
        v_and_b32 v10, 15, v0
        v_lshrrev_b32 v11, 4, v0
        v_add_u32 v12, 1, v10
        v_and_b32 v13, 3, v12
        v_lshrrev_b32 v12, 2, v12
        v_mul_u32_u24 v13, %(hc)d, v13
        v_lshl_add_u32 v13, v12, 3, v13
        v_lshl_add_u32 v13, v11, 4, v13
        s_and_b32 %(t0)s, %(w)s, 1
        s_lshr_b32 %(t1)s, %(w)s, 1
        s_lshl_b32 %(t1)s, %(t1)s, 8
        s_mul_i32 %(t2)s, %(t0)s, %(hch)d
        s_add_u32 %(t2)s, %(t2)s, %(t1)s
        v_add_u32 v4, %(t2)s, v13
        s_mul_i32 %(t2)s, %(t0)s, %(uch)d
        s_add_u32 %(t2)s, %(t2)s, %(t1)s
        s_add_u32 %(t2)s, %(t2)s, %(ub)d
        v_lshlrev_b32 v12, 5, v10
        v_lshlrev_b32 v13, 4, v11
        v_sub_u32 v13, v13, v12
        v_add_u32 v5, %(t2)s, v13
        v_lshlrev_b32 v13, 3, v11
        v_add_u32 v13, v13, v12
        s_lshl_b32 %(t2)s, %(w)s, 10
        s_sub_u32 %(t2)s, %(ud)d, %(t2)s
        v_sub_u32 v40, %(t2)s, v13
        s_lshl_b32 %(t2)s, %(w)s, 13
        s_add_u32 %(t2)s, %(t2)s, %(red)d
        v_add_u32 v41, %(t2)s, v1
        s_lshl_b32 %(t2)s, %(w)s, 11
        s_add_u32 %(t2)s, %(t2)s, %(red)d
        v_add_u32 v42, %(t2)s, v1
        v_lshrrev_b32 v12, 1, v10
        v_lshlrev_b32 v43, 15, v12
        v_and_b32 v12, 1, v10
        v_lshl_add_u32 v43, v12, 5, v43
        v_and_b32 v12, 1, v11
        v_lshl_add_u32 v43, v12, 6, v43
        v_lshrrev_b32 v12, 1, v11
        v_lshl_add_u32 v43, v12, 4, v43
        s_and_b32 %(d1)s, %(d0)s, %(hi)s
        s_lshl_b32 %(d0)s, %(d0)s, 16
        ''' % dict(t0=sT0, t1=sT1, t2=sT2, w=sW, hc=HCOPY, hch=HCH, uch=UCH, ub=L_U + 480, ud=L_U + 4088 - 512,
                   red=L_RED, d0=sD0, d1=sD1, hi=sHI16))
        g.wait_vm(ud)
        g.barrier()
        self.stamp('u landed')

    def phase_conv(self):
        g = self.g
        Y, A, B = 8, 128, 160
        DU, DUP = 44, 60

        def ldA(f, gg):
            return ['ds_read_b64 %s, v4 offset:%d' % (v(A + 4 * f, 2), 512 * f + 64 * gg),
                    'ds_read_b64 %s, v4 offset:%d' % (v(A + 4 * f + 2, 2), 512 * f + 64 * gg + 8)]

        def ldB(n, gg):
            return ['ds_read_b128 %s, v5 offset:%d' % (v(B + 4 * n, 4), 512 * (7 - n) + 64 * gg)]

        for i in ldA(0, 0):
            g.I(i)
        for n in range(7, -1, -1):
            g.I(ldB(n, 0)[0])
        pend = []
        for f in range(1, 8):
            pend += ldA(f, 0)
        side = []
        for i in range(2):
            for ch in range(2):
                side.append('ds_read_b64 %s, v40 offset:%d' % (v(DUP + 4 * i + 2 * ch, 2), ch * UCH + 512 * (1 - i)))
        for i in range(2):
            for ch in range(2):
                p, d, D = DUP + 4 * i + 2 * ch, DU + 8 * i + 4 * ch, (sD1 if ch else sD0)
                side += ['v_and_b32 %s, %s, %s' % (v(d), sHI16, v(p + 1)),
                         'v_lshlrev_b32 %s, 16, %s' % (v(d + 1), v(p + 1)),
                         'v_and_b32 %s, %s, %s' % (v(d + 2), sHI16, v(p)),
                         'v_lshlrev_b32 %s, 16, %s' % (v(d + 3), v(p))]
                side += ['v_mul_f32 %s, %s, %s' % (v(d + r), D, v(d + r)) for r in range(4)]
        for gg in range(3):
            for f in range(8):
                for n in range(7 - f, -1, -1):
                    g.I(mf32(v(Y + 4 * (f + n), 4), v(A + 4 * f, 4), v(B + 4 * n, 4), '0' if (gg == 0 and f == 0) else None))
                    q = []
                    if n == 7 - f:
                        q += ldB(n, gg + 1)
                    if n == 0:
                        q += ldA(f, gg + 1)
                    for i in q:
                        g.I(i)
                    k = 2 - len(q)
                    while k > 0 and pend:
                        g.I(pend.pop(0)); k -= 1
                    while k > 0 and gg >= 1 and side:
                        g.I(side.pop(0)); k -= 1
        assert not pend
        done = []
        for n in (6, 5, 4, 3, 2, 1, 0, 7):
            for f in range(n + 1):
                g.I(mf32(v(Y + 4 * n, 4), v(A + 4 * f, 4), v(B + 4 * (n - f), 4)))
                done = [(t, age + 1) for (t, age) in done]
                if done and done[0][1] >= 4:
                    t = done.pop(0)[0]
                    g.I('ds_write_b128 v41, %s offset:%d' % (v(Y + 4 * t, 4), 1024 * t))
                elif side:
                    g.I(side.pop(0))
            done.append((n, 0))
        for i in side:
            g.I(i)
        for (t, _) in done:
            g.I('ds_write_b128 v41, %s offset:%d' % (v(Y + 4 * t, 4), 1024 * t))
        g.barrier()
        self.stamp('conv done')
        P = 128
        for i in range(2):
            for ch in range(2):
                for gh in range(2):
                    g.I('ds_read_b128 %s, v42 offset:%d' % (v(P + 16 * i + 8 * ch + 4 * gh, 4), (2 * gh + ch) * 8192 + 1024 * i))
        g.L('''
        s_lshl_b32 %(t0)s, %(w)s, 19
        s_lshl_b32 %(t1)s, %(cp)s, 7
        s_add_u32 %(t0)s, %(t0)s, %(t1)s
        s_add_u32 %(t0)s, %(t0)s, %(y)d
        s_add_u32 %(t1)s, %(t0)s, 0x40000
        ''' % dict(t0=sT0, t1=sT1, w=sW, cp=sCP, y=WS_Y))
        for i in range(2):
            o = 8 + 4 * i
            for ch in range(2):
                p, d = P + 16 * i + 8 * ch, DU + 8 * i + 4 * ch
                for h in range(2):
                    g.I('v_pk_add_f32 %s, %s, %s' % (v(d + 2 * h, 2), v(d + 2 * h, 2), v(p + 2 * h, 2)))
                for h in range(2):
                    g.I('v_pk_add_f32 %s, %s, %s' % (v(d + 2 * h, 2), v(d + 2 * h, 2), v(p + 4 + 2 * h, 2)))
                for h in range(2):
                    g.I('v_cvt_pk_bf16_f32 %s, %s, %s' % (v(o + 2 * ch + h), v(d + 2 * h), v(d + 2 * h + 1)))
            g.I('v_permlane16_swap_b32 %s, %s' % (v(o), v(o + 2)))
            g.I('v_permlane16_swap_b32 %s, %s' % (v(o + 1), v(o + 3)))
            g.I('buffer_store_dwordx4 %s, v43, %s, %s offen sc1' % (v(o, 4), WS, sT1 if i else sT0))
        self.stamp('y stored')

    def wo_dma(self, quarter):
        g = self.g
        g.L('''
        s_lshl_b32 %(t0)s, %(cb)s, 8
        s_lshl_b32 %(t1)s, %(w)s, 6
        s_add_u32 %(t0)s, %(t0)s, %(t1)s
        s_add_u32 %(t0)s, %(t0)s, %(qo)d
        s_lshl_b32 %(t1)s, %(w)s, 13
        s_add_u32 %(t1)s, %(t1)s, %(l)d
        ''' % dict(t0=sT0, t1=sT1, cb=sCB, w=sW, qo=quarter * 128 * 1024, l=L_WO[quarter]))
        return self.dma_rows('v40', SWO, sT0, sT1, 8, 16 * 1024)

    def wo_reads(self, quarter, vb):
        out = []
        for h in range(4):
            hp = 4 * quarter + h
            for tau in range(2):
                for u in range(2):
                    out.append('ds_read_b64_tr_b16 %s, %s offset:%d' % (
                        v(WO0 + 64 * tau + 4 * hp + 2 * u, 2), vb, 2048 * h + 1024 * u + 8 * tau))
        return out

    def phase_h2(self):
        g = self.g
        for i in range(8):
            g.I('v_lshlrev_b32 %s, 16, %s' % (v(XR + 2 * i), v(YPK + i)))
            g.I('v_and_b32 %s, %s, %s' % (v(XR + 2 * i + 1), sHI16, v(YPK + i)))
        self.stats_partial(16)
        st = self.stats_store(16, 0, 24)
        g.L('''
        v_lshrrev_b32 v40, 2, v0
        v_and_b32 v41, 3, v0
        v_lshlrev_b32 v40, 10, v40
        v_lshl_add_u32 v40, v41, 4, v40
        ''')
        g.I('s_mul_i32 %s, %s, %d' % (sT0, sW, 128 * 3072))
        g.I('s_lshl_b32 %s, %s, 6' % (sT1, sHP))
        g.I('s_add_u32 %s, %s, %s' % (sT0, sT0, sT1))
        g.I('s_lshl_b32 %s, %s, 13' % (sT1, sW))
        g.I('s_add_u32 %s, %s, %d' % (sT1, sT1, L_WQ))
        wq_last = self.dma_rows('v6', SW, sT0, sT1, 8, 16 * 3072)
        wo0 = self.wo_dma(0)
        g.L('''
        s_lshl_b32 %(t0)s, %(cp)s, 2
        s_add_u32 %(t0)s, %(t0)s, %(w)s
        s_lshl_b32 %(t0)s, %(t0)s, 6
        s_add_u32 %(t0)s, %(t0)s, %(f2)d
        s_lshl_b32 %(t2)s, %(cb)s, 2
        s_add_u32 %(t2)s, %(t2)s, %(w)s
        ''' % dict(t0=sT0, t2=sT2, cp=sCP, cb=sCB, w=sW, f2=WS_F2))
        self.flag_addr_rb(sT1, FK_S, sRB, sT2)
        self.publish_global(st, sT0)
        self.publish_local(st, sT1)
        self.stamp('h2 published')
        g.L('''
        v_lshrrev_b32 v10, 4, v0
        v_bfe_u32 v11, v0, 2, 2
        v_and_b32 v12, 3, v0
        v_lshl_add_u32 v13, v10, 3, v11
        v_lshlrev_b32 v13, 6, v13
        v_lshl_add_u32 v13, v12, 3, v13
        v_and_b32 v14, 1, v10
        v_lshl_add_u32 v41, v14, 5, v13
        v_xor_b32 v42, 32, v41
        s_and_b32 %(t0)s, %(w)s, 1
        s_lshl_b32 %(t0)s, %(t0)s, 5
        v_xor_b32 v43, %(t0)s, v41
        v_add_u32 v43, %(wkv)d, v43
        v_lshl_add_u32 v13, v10, 2, v11
        v_lshlrev_b32 v13, 6, v13
        v_lshl_add_u32 v13, v12, 4, v13
        s_lshl_b32 %(t0)s, %(w)s, 13
        v_add_u32 v13, %(t0)s, v13
        v_add_u32 v44, %(o0)d, v13
        v_add_u32 v45, %(o1)d, v13
        v_add_u32 v46, %(o2)d, v13
        v_add_u32 v47, %(o3)d, v13
        ''' % dict(t0=sT0, w=sW, wkv=L_WKV, o0=L_WO[0], o1=L_WO[1], o2=L_WO[2], o3=L_WO[3]))
        g.barrier()
        wo1 = self.wo_dma(1)
        for p in range(2):
            for ks in range(16):
                for u in range(2):
                    g.I('ds_read_b64_tr_b16 %s, v43 offset:%d' % (a(64 * p + 4 * ks + 2 * u, 2), 32768 * p + 2048 * ks + 256 * u))
        g.wait_vm(wq_last)
        g.barrier()
        wo2 = self.wo_dma(2)
        wo3 = self.wo_dma(3)
        rd = []
        for hh in range(2):
            for ks in range(16):
                for u in range(2):
                    rd.append('ds_read_b64_tr_b16 %s, %s offset:%d' % (a(128 + 64 * hh + 4 * ks + 2 * u, 2), 'v42' if hh else 'v41', 2048 * ks + 256 * u))
        mfs = []
        for p in range(2):
            for ks in range(16):
                mfs.append(mf32(v(8 + 4 * p, 4), v(ONES, 4), a(64 * p + 4 * ks, 4), '0' if ks == 0 else None))
        weave(g, mfs, rd, per=2)
        g.wait_vm(wo1)
        rd = self.wo_reads(0, 'v44') + self.wo_reads(1, 'v45')
        mfs = []
        for hh in range(2):
            for ks in range(16):
                mfs.append(mf32(v(CSQ + 4 * hh, 4), a(128 + 64 * hh + 4 * ks, 4), v(ONES, 4), '0' if ks == 0 else None))
        weave(g, mfs, rd, per=1)
        g.I('v_mov_b32 %s, v8' % v(CSK))
        g.I('v_mov_b32 %s, v12' % v(CSV))
        g.wait_vm(wo3)
        for i in self.wo_reads(2, 'v46') + self.wo_reads(3, 'v47'):
            g.I(i)
        self.stamp('weights done')
        g.L('''
        v_and_b32 v10, 15, v0
        v_lshlrev_b32 v10, 8, v10
        s_lshl_b32 %(t0)s, %(cb)s, 2
        s_add_u32 %(t0)s, %(t0)s, %(w)s
        s_lshl_b32 %(t1)s, %(t0)s, 11
        s_lshl_b32 %(t0)s, %(t0)s, 12
        s_lshr_b32 %(t2)s, %(rb)s, 4
        s_lshl_b32 %(t2)s, %(t2)s, 6
        s_add_u32 %(t0)s, %(t0)s, %(t2)s
        s_add_u32 %(t0)s, %(t0)s, %(f2)d
        s_lshl_b32 %(t2)s, %(rb)s, 15
        s_add_u32 %(t1)s, %(t1)s, %(t2)s
        s_add_u32 %(t1)s, %(t1)s, %(y)d
        ''' % dict(t0=sT0, t1=sT1, t2=sT2, cb=sCB, w=sW, rb=sRB, f2=WS_F2, y=WS_Y))
        self.poll_global('v10', sT0, 11)
        self.stamp('h2 seen')
        g.I('buffer_load_dwordx4 v[8:11], %s, %s, %s offen sc1' % (vL16, WS, sT1))
        g.I('buffer_load_dwordx4 v[12:15], %s, %s, %s offen offset:1024 sc1' % (vL16, WS, sT1))
        g.L('''
        s_lshl_b32 %(t0)s, %(w)s, 13
        s_add_u32 %(t0)s, %(t0)s, %(o3)d
        v_add_u32 v16, %(t0)s, v1
        v_lshrrev_b32 v17, 4, v0
        v_bfe_u32 v18, v0, 2, 2
        v_and_b32 v19, 3, v0
        v_lshl_add_u32 v17, v17, 3, v18
        v_lshlrev_b32 v17, 6, v17
        v_lshl_add_u32 v17, v19, 3, v17
        v_add_u32 v17, %(t0)s, v17
        ''' % dict(t0=sT0, w=sW, o3=L_WO[3]))
        g.wait_lg()
        g.I('ds_write_b128 v16, v[8:11]')
        g.I('ds_write_b128 v16, v[12:15] offset:1024')
        g.wait_lg()
        for rt in range(2):
            for tau in range(2):
                g.I('ds_read_b64_tr_b16 %s, v17 offset:%d' % (v(YPK + 4 * rt + 2 * tau, 2), 256 * tau + 32 * rt))
        self.stamp('y loaded')

    def phase_e(self, layer):
        g = self.g
        g.I('v_and_b32 v40, 15, %s' % vL)
        g.I('v_lshlrev_b32 v40, 2, v40')
        g.I('s_lshl_b32 %s, %s, 6' % (sT1, sRB))
        g.I('s_add_u32 %s, %s, %d' % (sT1, sT1, WS_FL + (FK_S + layer) * 4096))
        self.poll_local('v40', sT1, 42)
        self.stamp('stats seen')
        self.stats_load(sRB, 2 * layer, 8, 40)
        YU = 24
        for i in range(8):
            g.I('v_lshlrev_b32 %s, 16, %s' % (v(YU + 2 * i), v(YPK + i)))
            g.I('v_and_b32 %s, %s, %s' % (v(YU + 2 * i + 1), sHI16, v(YPK + i)))
        g.L('''
        s_lshl_b32 %(t0)s, %(cb)s, 2
        s_add_u32 %(t2)s, %(t0)s, %(w)s
        s_lshl_b32 %(t0)s, %(t2)s, 10
        s_lshl_b32 %(t1)s, %(rb)s, 15
        s_add_u32 %(t0)s, %(t0)s, %(t1)s
        s_add_u32 s64, %(t0)s, %(x)d
        s_add_u32 s65, s64, 0x4000
        ''' % dict(t0=sT0, t1=sT1, t2=sT2, cb=sCB, w=sW, rb=sRB, x=WS_X + layer * 0x200000))
        self.flag_addr_rb('s66', FK_X + layer, sRB, sT2)
        self.stats_finish(8)
        g.I('v_mul_f32 v10, -v8, v9')
        g.I('v_mov_b32 v12, v9')
        g.I('v_mov_b32 v13, v10')
        g.I('v_mov_b32 v8, v9')
        g.I('v_mov_b32 v9, v10')
        g.I('v_permlane16_swap_b32 v8, v12')
        g.I('v_permlane16_swap_b32 v9, v13')
        T = 48
        for rt in range(2):
            rm = 8 + 4 * rt
            for i in range(4):
                x = XR + 8 * rt + 2 * i
                g.I('v_pk_fma_f32 %s, %s, %s, %s op_sel:[0,0,1] op_sel_hi:[1,0,1]' % (v(T + 2 * i, 2), v(x, 2), v(rm, 2), v(rm, 2)))
            for i in range(4):
                x = XR + 8 * rt + 2 * i
                g.I('v_pk_fma_f32 %s, %s, %s, %s' % (v(x, 2), v(T + 2 * i, 2), v(YU + 8 * rt + 2 * i, 2), v(x, 2)))
            for i in range(4):
                x = XR + 8 * rt + 2 * i
                g.I('v_cvt_pk_bf16_f32 %s, %s, %s' % (v(56 + 4 * rt + i), v(x), v(x + 1)))
            g.I('buffer_store_dwordx4 %s, %s, %s, %s offen' % (v(56 + 4 * rt, 4), vL16, WS, 's65' if rt else 's64'))
        self.stats_partial(16)
        st = self.stats_store(16, 2 * layer + 1, 40)
        self.publish_local(st, 's66')
        self.stamp('x published')

    def phi_ops(self, acc, u, e, t1, m, cs, r, r2, dst):
        return ['v_fma_f32 %s, -%s, %s, %s' % (u, m, cs, acc),
                'v_mul_f32 %s, %s, %s' % (e, u, r2),
                'v_exp_f32 %s, %s clamp' % (e, e),
                'v_fma_f32 %s, %s, %s, %s' % (t1, u, r, sC1),
                'v_add_f32 %s, %s, %s' % (e, sEPS6, e),
                'v_max_f32 %s, %s, %s' % (dst, t1, e)]

    def phase_gemm(self, layer):
        g = self.g
        g.I('v_lshlrev_b32 v40, 2, %s' % vL)
        g.I('s_lshl_b32 %s, %s, 8' % (sT1, sRG))
        g.I('s_add_u32 %s, %s, %d' % (sT1, sT1, WS_FL + (FK_X + layer) * 4096))
        g.L('''
        s_lshl_b32 s64, %(rg)s, 2
        s_add_u32 s64, s64, %(w)s
        s_lshr_b32 %(t0)s, %(w)s, 1
        s_lshl_b32 s65, %(t0)s, 16
        s_and_b32 %(t0)s, %(w)s, 1
        s_lshl_b32 %(t0)s, %(t0)s, 13
        s_add_u32 s66, s65, %(t0)s
        s_lshl_b32 s67, %(rg)s, 17
        s_add_u32 s67, s67, s66
        s_add_u32 s67, s67, %(x)d
        v_add_u32 v4, s65, v1
        s_lshl_b32 %(t0)s, %(w)s, 15
        v_add_u32 v5, %(t0)s, v1
        v_lshrrev_b32 v41, 4, v0
        v_lshlrev_b32 v6, 4, v41
        s_lshr_b32 %(t0)s, s65, 8
        s_add_u32 %(t0)s, %(t0)s, %(tab)d
        v_add_u32 v6, %(t0)s, v6
        ''' % dict(rg=sRG, w=sW, t0=sT0, x=WS_X + layer * 0x200000, tab=L_TAB))
        self.poll_local('v40', sT1, 42)
        self.stamp('x seen')
        self.stats_load('s64', 2 * layer + 1, 8, 40)
        stage = []
        for j in range(4):
            if j:
                g.I('s_add_u32 s66, s66, %d' % (16384 - 4096))
                g.I('s_add_u32 s67, s67, %d' % (16384 - 4096))
            stage.append(self.dma(vL16, WS, 's67', 's66', 8, 'sc1'))
        self.stats_finish(8)
        g.L('''
        v_mul_f32 v10, %(l2e)s, v9
        v_cmp_gt_u32 vcc, 32, v0
        v_and_b32 v11, 31, v0
        v_lshrrev_b32 v12, 5, v0
        v_lshlrev_b32 v11, 2, v11
        s_lshl_b32 %(t0)s, %(w)s, 7
        s_add_u32 %(t0)s, %(t0)s, %(tab)d
        v_cndmask_b32 v8, v9, v8, vcc
        v_add_u32 v11, %(t0)s, v11
        v_lshl_add_u32 v12, v12, 9, v11
        ds_write_b32 v12, v8
        ds_write_b32 v11, v10 offset:1024
        ''' % dict(l2e=sLOG2E, t0=sT0, w=sW, tab=L_TAB))
        ACC = [8, 16]
        FR = 24
        M4, R4, R2 = 40, 44, 76
        U, E, T1 = 48, 52, 56
        PK, VP, KVA, ZA = 60, 64, 68, 72

        def epi(j):
            ak, av = ACC[j & 1], ACC[j & 1] + 4
            ops = []
            chains = [self.phi_ops(v(ak + r), v(U + r), v(E + r), v(T1 + r), v(M4 + r), v(CSK), v(R4 + r), v(R2 + r), v(ak + r)) for r in range(4)]
            for step in range(6):
                for r in range(4):
                    ops.append(chains[r][step])
                if step == 0:
                    ops += ['v_fma_f32 %s, -%s, %s, %s' % (v(av + r), v(M4 + r), v(CSV), v(av + r)) for r in range(4)]
                if step == 1:
                    ops += ['v_mul_f32 %s, %s, %s' % (v(av + r), v(av + r), v(R4 + r)) for r in range(4)]
            for h in range(2):
                ops.append('v_cvt_pk_bf16_f32 %s, %s, %s' % (v(VP + 2 * (j & 1) + h), v(av + 2 * h), v(av + 2 * h + 1)))
            for h in range(2):
                ops.append('v_cvt_pk_bf16_f32 %s, %s, %s' % (v(PK + 2 * (j & 1) + h), v(ak + 2 * h), v(ak + 2 * h + 1)))
            return ops

        def tabs(j):
            return ['ds_read_b128 %s, v6 offset:%d' % (v(M4, 4), 64 * j),
                    'ds_read_b128 %s, v6 offset:%d' % (v(R4, 4), 512 + 64 * j),
                    'ds_read_b128 %s, v6 offset:%d' % (v(R2, 4), 1024 + 64 * j)]

        def kvm(first):
            return [mf32(v(KVA, 4), v(PK, 4), v(VP, 4), '0' if first else None),
                    mf32(v(ZA, 4), v(PK, 4), v(ONES, 4), '0' if first else None)]

        PF = 3
        for j in range(4):
            g.wait_vm(stage[j])
            g.barrier()
            if j == 0:
                self.stamp('x landed0')
            rd = lambda ks: 'ds_read_b128 %s, v4 offset:%d' % (v(FR + 4 * (ks & 3), 4), 16384 * j + 1024 * ks)
            for ks in range(PF):
                g.I(rd(ks))
            fill = []
            if j:
                fill = tabs(j - 1) + [None] * 3 + epi(j - 1)
            ak, av = ACC[j & 1], ACC[j & 1] + 4
            for ks in range(16):
                fr = v(FR + 4 * (ks & 3), 4)
                g.I(mf32(v(ak, 4), fr, a(4 * ks, 4), '0' if ks == 0 else None))
                for _ in range(2):
                    if fill:
                        i = fill.pop(0)
                        if i:
                            g.I(i)
                g.I(mf32(v(av, 4), fr, a(64 + 4 * ks, 4), '0' if ks == 0 else None))
                if ks + PF < 16:
                    g.I(rd(ks + PF))
                elif fill:
                    g.I(fill.pop(0))
                if fill:
                    i = fill.pop(0)
                    if i:
                        g.I(i)
            for i in fill:
                if i:
                    g.I(i)
            if j == 2:
                for i in kvm(True):
                    g.I(i)
        self.stamp('kv mfma done')
        for i in tabs(3):
            g.I(i)
        rdq = lambda i, ks: 'ds_read_b128 %s, v5 offset:%d' % (v(FR + 4 * (ks & 3), 4), 16384 * i + 1024 * ks)
        for ks in range(PF):
            g.I(rdq(0, ks))
        for i in epi(3):
            g.I(i)
        for i in kvm(False):
            g.I(i)
        g.L('''
        s_lshl_b32 %(t0)s, %(w)s, 11
        s_add_u32 %(t0)s, %(t0)s, %(kvs)d
        v_add_u32 v40, %(t0)s, v1
        s_lshl_b32 %(t0)s, %(hp)s, 4
        s_add_u32 %(t0)s, %(t0)s, %(rg)s
        s_mul_i32 s64, %(t0)s, %(sz)d
        s_add_u32 s64, s64, %(kvp)d
        s_lshl_b32 s65, %(t0)s, 6
        s_add_u32 s65, s65, %(f4)d
        ''' % dict(t0=sT0, w=sW, kvs=L_KVS - 2048, hp=sHP, rg=sRG, sz=KVP_SZ, kvp=WS_KVP + layer * 256 * KVP_SZ,
                   f4=WS_F4 + layer * 256 * 64))
        l1, l2 = self.lab('kv'), self.lab('kv')
        g.I('s_cmp_eq_u32 %s, 0' % sW)
        g.branch('s_cbranch_scc1 ' + l1)
        g.cond_begin()
        g.I('ds_write_b128 v40, %s' % v(KVA, 4))
        g.I('ds_write_b128 v40, %s offset:1024' % v(ZA, 4))
        g.cond_end()
        g.label(l1)
        g.barrier()
        g.I('s_cmp_lg_u32 %s, 0' % sW)
        g.branch('s_cbranch_scc1 ' + l2)
        g.cond_begin()
        S = 40
        g.I('v_add_u32 v86, %d, %s' % (L_KVS, vL16))
        for wv in range(3):
            g.I('ds_read_b128 %s, v86 offset:%d' % (v(S + 8 * wv, 4), 2048 * wv))
            g.I('ds_read_b128 %s, v86 offset:%d' % (v(S + 8 * wv + 4, 4), 2048 * wv + 1024))
        g.I('v_and_b32 v86, 15, %s' % vL)
        g.I('v_cmp_eq_u32 vcc, 0, v86')
        g.I('v_mov_b32 v87, 0x40000000')
        g.I('v_cndmask_b32 v86, v87, %s, vcc' % vL)
        for h in range(4):
            g.I('v_pk_add_f32 %s, %s, %s' % (v(KVA + 2 * h, 2), v(KVA + 2 * h, 2), v(S + 8 + 2 * h, 2)))
            g.I('v_pk_add_f32 %s, %s, %s' % (v(S + 2 * h, 2), v(S + 2 * h, 2), v(S + 16 + 2 * h, 2)))
        g.I('v_cvt_pk_bf16_f32 v64, %s, %s' % (v(KVA), v(KVA + 1)))
        g.I('v_cvt_pk_bf16_f32 v65, %s, %s' % (v(KVA + 2), v(KVA + 3)))
        g.I('v_cvt_pk_bf16_f32 v66, %s, %s' % (v(S), v(S + 1)))
        g.I('v_cvt_pk_bf16_f32 v67, %s, %s' % (v(S + 2), v(S + 3)))
        g.I('buffer_store_dwordx4 v[64:67], %s, %s, s64 offen sc1' % (vL16, WS))
        g.I('buffer_store_dwordx4 %s, v86, %s, s64 offen offset:1024 sc1' % (v(ZA, 4), WS))
        g.I('buffer_store_dwordx4 %s, v86, %s, s64 offen offset:1088 sc1' % (v(S + 4, 4), WS))
        g.cond_end()
        g.label(l2)
        self.stamp('kv stored')
        g.L('''
        v_and_b32 v86, 15, v0
        v_lshlrev_b32 v86, 2, v86
        s_lshl_b32 %(t0)s, %(w)s, 7
        s_add_u32 %(t0)s, %(t0)s, %(tab)d
        v_add_u32 v86, %(t0)s, v86
        ''' % dict(t0=sT0, w=sW, tab=L_TAB))
        QM = 80
        PQ = 60

        def epiq(i):
            ops = []
            for hh in range(2):
                acc = 8 + 8 * i + 4 * hh
                chains = [self.phi_ops(v(acc + r), v(U + r), v(E + r), v(T1 + r), v(QM + 3 * i), v(CSQ + 4 * hh + r),
                                       v(QM + 3 * i + 1), v(QM + 3 * i + 2), v(acc + r)) for r in range(4)]
                for step in range(6):
                    for r in range(4):
                        ops.append(chains[r][step])
                for h in range(2):
                    ops.append('v_cvt_pk_bf16_f32 %s, %s, %s' % (v(PQ + 4 * i + 2 * hh + h), v(acc + 2 * h), v(acc + 2 * h + 1)))
            return ops

        for i in range(2):
            fill = []
            if i == 0:
                for ii in range(2):
                    for k in range(3):
                        fill.append('ds_read_b32 %s, v86 offset:%d' % (v(QM + 3 * ii + k), 512 * k + 64 * ii))
            else:
                fill = [None] * 6 + epiq(0)
            for ks in range(16):
                fr = v(FR + 4 * (ks & 3), 4)
                g.I(mf32(v(8 + 8 * i, 4), a(128 + 4 * ks, 4), fr, '0' if ks == 0 else None))
                for _ in range(2):
                    if fill:
                        x = fill.pop(0)
                        if x:
                            g.I(x)
                g.I(mf32(v(12 + 8 * i, 4), a(192 + 4 * ks, 4), fr, '0' if ks == 0 else None))
                kk = 16 * i + ks + PF
                if kk < 32:
                    g.I(rdq(kk >> 4, kk & 15))
                if fill:
                    x = fill.pop(0)
                    if x:
                        g.I(x)
            rest = [x for x in fill if x]
            if i == 0:
                for x in rest:
                    g.I(x)
                l3 = self.lab('kv')
                g.I('s_cmp_lg_u32 %s, 0' % sW)
                g.branch('s_cbranch_scc1 ' + l3)
                g.cond_begin()
                g.force_wait(vm=0)
                g.I('buffer_store_dword %s, %s, %s, s65 offen sc1' % (vN, vL0, WS))
                g.cond_end()
                g.label(l3)
        for x in rest + epiq(1):
            g.I(x)
        self.stamp('q done')

    def phase_o(self, layer):
        g = self.g
        PQ = 60
        g.L('''
        v_and_b32 v56, 15, v0
        v_lshlrev_b32 v57, 6, v56
        s_lshl_b32 %(t0)s, %(hp)s, 10
        s_add_u32 %(t0)s, %(t0)s, %(f4)d
        s_mul_i32 s64, %(hp)s, %(sz16)d
        s_add_u32 s64, s64, %(kvp)d
        v_mul_u32_u24 v56, %(sz)d, v56
        v_lshrrev_b32 v58, 4, v0
        v_lshl_add_u32 v56, v58, 4, v56
        s_lshl_b32 s66, %(rg)s, 2
        s_add_u32 s66, s66, %(w)s
        s_lshl_b32 s67, s66, 15
        s_lshl_b32 %(t1)s, %(hp)s, 10
        s_add_u32 s67, s67, %(t1)s
        s_add_u32 s67, s67, %(o)d
        s_add_u32 s68, s67, 0x4000
        ''' % dict(t0=sT0, t1=sT1, hp=sHP, rg=sRG, w=sW, f4=WS_F4 + layer * 256 * 64, sz16=16 * KVP_SZ, sz=KVP_SZ,
                   kvp=WS_KVP + layer * 256 * KVP_SZ, o=WS_O + layer * 0x200000))
        self.flag_addr_rb('s69', FK_O + layer, 's66', sHP)
        self.poll_global('v57', sT0, 58)
        self.stamp('kv seen')
        Z, AC = 48, 40
        g.I('buffer_load_dwordx4 %s, v56, %s, s64 offen offset:1024 sc1' % (v(Z, 4), WS))
        g.I('buffer_load_dwordx4 %s, v56, %s, s64 offen offset:1088 sc1' % (v(Z + 4, 4), WS))

        def ld(p):
            if p and p % 3 == 0:
                g.I('s_add_u32 s64, s64, %d' % (3 * KVP_SZ))
            g.I('buffer_load_dwordx4 %s, %s, %s, s64 offen offset:%d sc1' % (v(8 + 4 * (p & 7), 4), vL16, WS, (p % 3) * KVP_SZ))
        for p in range(8):
            ld(p)
        for rot in (8, 4, 2, 1):
            for i in range(8):
                g.I('v_add_f32_dpp %s, %s, %s row_ror:%d row_mask:0xf bank_mask:0xf' % (v(Z + i), v(Z + i), v(Z + i), rot))
        KVB, ZB = 68, 72
        for i in range(4):
            g.I('v_cvt_pk_bf16_f32 %s, %s, %s' % (v(ZB + i), v(Z + 2 * i), v(Z + 2 * i + 1)))
        for p in range(16):
            b = 8 + 4 * (p & 7)
            for d in range(4):
                g.I('v_dot2_f32_bf16 %s, %s, %s, %s' % (v(AC + 2 * d), v(b + d), sE0, '0' if p == 0 else v(AC + 2 * d)))
                g.I('v_dot2_f32_bf16 %s, %s, %s, %s' % (v(AC + 2 * d + 1), v(b + d), sE1, '0' if p == 0 else v(AC + 2 * d + 1)))
            if p + 8 < 16:
                ld(p + 8)
        for i in range(4):
            g.I('v_cvt_pk_bf16_f32 %s, %s, %s' % (v(KVB + i), v(AC + 2 * i), v(AC + 2 * i + 1)))
        self.stamp('kv reduced')
        NUM, DEN, OP = 8, 24, 40
        for i in range(2):
            for hh in range(2):
                k = 2 * i + hh
                g.I(mf16(v(DEN + 4 * k, 4), v(ZB + 2 * hh, 2), v(PQ + 2 * k, 2), '0'))
        for i in range(2):
            for hh in range(2):
                k = 2 * i + hh
                g.I(mf16(v(NUM + 4 * k, 4), v(KVB + 2 * hh, 2), v(PQ + 2 * k, 2), '0'))
        for k in range(4):
            g.I('v_add_f32 %s, %s, %s' % (v(DEN + 4 * k), sEPS6, v(DEN + 4 * k)))
        for k in range(4):
            g.I('v_rcp_f32 %s, %s' % (v(DEN + 4 * k), v(DEN + 4 * k)))
        st = None
        for i in range(2):
            for hh in range(2):
                k = 2 * i + hh
                for h in range(2):
                    g.I('v_pk_mul_f32 %s, %s, %s op_sel_hi:[1,0]' % (v(NUM + 4 * k + 2 * h, 2), v(NUM + 4 * k + 2 * h, 2), v(DEN + 4 * k, 2)))
            for hh in range(2):
                k = 2 * i + hh
                for h in range(2):
                    g.I('v_cvt_pk_bf16_f32 %s, %s, %s' % (v(OP + 4 * i + 2 * hh + h), v(NUM + 4 * k + 2 * h), v(NUM + 4 * k + 2 * h + 1)))
            st = g.I('buffer_store_dwordx4 %s, %s, %s, %s offen' % (v(OP + 4 * i, 4), vL16, WS, 's68' if i else 's67'))
        self.publish_local(st, 's69')
        self.stamp('o published')

    def phase_out(self, layer):
        g = self.g
        g.L('''
        v_and_b32 v40, 3, v0
        v_lshlrev_b32 v40, 2, v40
        s_lshl_b32 %(t0)s, %(w)s, 2
        s_lshl_b32 s64, %(rb)s, 15
        s_lshl_b32 %(t2)s, %(w)s, 12
        s_add_u32 s64, s64, %(t2)s
        s_add_u32 s64, s64, %(o)d
        s_lshl_b32 s65, %(w)s, 15
        v_add_u32 v4, 0x10000, v1
        ''' % dict(t0=sT0, t2=sT2, w=sW, rb=sRB, o=WS_O + layer * 0x200000))
        self.flag_addr_rb(sT1, FK_O + layer, sRB, sT0)
        self.poll_local('v40', sT1, 42)
        self.stamp('o seen')
        self.dma(vL16, WS, 's64', 's65', 4, 'sc1')
        g.I('s_add_u32 s64, s64, 0x4000')
        g.I('s_add_u32 s65, s65, 4096')
        last = self.dma(vL16, WS, 's64', 's65', 4, 'sc1')
        g.wait_vm(last)
        g.barrier()
        self.stamp('o landed')
        FR, PF = 8, 5

        def rd(k):
            hp, rt = k >> 1, k & 1
            return 'ds_read_b128 %s, %s offset:%d' % (v(FR + 4 * (k & 7), 4), 'v4' if hp >= 8 else vL16,
                                                      32768 * ((hp >> 2) & 1) + 4096 * rt + 1024 * (hp & 3))
        for k in range(PF):
            g.I(rd(k))
        for k in range(32):
            hp, rt = k >> 1, k & 1
            for tau in range(2):
                g.I(mf32(v(XR + 8 * rt + 4 * tau, 4), v(WO0 + 64 * tau + 4 * hp, 4), v(FR + 4 * (k & 7), 4)))
            if k + PF < 32:
                g.I(rd(k + PF))
        self.stamp('out done')

    def stats_publish(self, layer):
        g = self.g
        g.I('s_lshl_b32 %s, %s, 2' % (sT2, sCB))
        g.I('s_add_u32 %s, %s, %s' % (sT2, sT2, sW))
        self.flag_addr_rb('s64', FK_S + layer, sRB, sT2)
        self.stats_partial(16)
        st = self.stats_store(16, 2 * layer, 24)
        self.publish_local(st, 's64')
        self.stamp('stats published')

    def finish(self):
        g = self.g
        g.I('v_add_u32 v4, 0x4000, %s' % vXA)
        for rt in range(2):
            for i in range(4):
                x = XR + 8 * rt + 2 * i
                g.I('v_cvt_pk_bf16_f32 %s, %s, %s' % (v(8 + 4 * rt + i), v(x), v(x + 1)))
            g.I('buffer_store_dwordx4 %s, %s, %s, 0 offen' % (v(8 + 4 * rt, 4), 'v4' if rt else vXA, SOUT))
        l1 = self.lab('n')
        g.I('s_or_b32 %s, s2, %s' % (sT0, sW))
        g.I('s_cmp_lg_u32 %s, 0' % sT0)
        g.branch('s_cbranch_scc1 ' + l1)
        g.cond_begin()
        g.I('buffer_store_dword %s, %s, %s, 0 offen sc1' % (vN, vL0, WS))
        g.cond_end()
        g.label(l1)
        if self.stamps:
            g.force_wait(vm=0)
            self.stamp('end')
            g.I('v_writelane_b32 %s, s100, 60' % vSTAMP)
            g.I('s_memrealtime s[100:101]')
            g.I('v_writelane_b32 %s, s100, 61' % vSTAMP)
            g.I('v_writelane_b32 %s, %s, 62' % (vSTAMP, sMODE))
            g.I('s_lshl_b32 %s, s2, 2' % sT0)
            g.I('s_add_u32 %s, %s, %s' % (sT0, sT0, sW))
            g.I('s_lshl_b32 %s, %s, 8' % (sT0, sT0))
            g.I('s_add_u32 %s, %s, %d' % (sT0, sT0, WS_STAMP))
            g.I('v_lshlrev_b32 v4, 2, %s' % vL)
            g.I('buffer_store_dword %s, v4, %s, %s offen' % (vSTAMP, WS, sT0))
        g.label('L_end')
        g.raw('    s_endpgm')

    def build(self):
        self.prologue()
        self.phase_a0()
        self.build_h()
        self.phase_h1()
        self.phase_conv()
        self.phase_h2()
        for layer in range(2):
            if layer:
                self.stats_publish(layer)
            self.phase_e(layer)
            self.phase_gemm(layer)
            self.phase_o(layer)
            self.phase_out(layer)
        self.finish()
        head = open('interleave_layers__ssm_conv_h3__linear_attn_block__prompt.s.ref').read().split('\n') \
            if False else []
        txt = '; @launch grid=(256,1,1) block=(256,1,1) lds=%d\n' % LDS_BYTES
        txt += '''; Persistent fused kernel: 256 workgroups (one per CU), 4 waves each. Generated by work/gen.py (hand-written generator).
.amdgcn_target "amdgcn-amd-amdhsa--gfx950"
.text
.globl %(n)s
.p2align 8
.type %(n)s,@function
%(n)s:
''' % dict(n=NAME)
        txt += self.g.text()
        txt += '''.section .rodata,"a"
.p2align 6
.amdhsa_kernel %(n)s
  .amdhsa_next_free_vgpr 512
  .amdhsa_next_free_sgpr 102
  .amdhsa_accum_offset 256
  .amdhsa_group_segment_fixed_size 0
  .amdhsa_kernarg_size 96
  .amdhsa_user_sgpr_count 2
  .amdhsa_user_sgpr_kernarg_segment_ptr 1
  .amdhsa_system_sgpr_workgroup_id_x 1
.end_amdhsa_kernel
''' % dict(n=NAME)
        return txt


if __name__ == '__main__':
    stamps = '--stamps' in sys.argv
    opts = {}
    for x in sys.argv:
        if x.startswith('--probe='):
            b, o, c = x[8:].split(',')
            opts['probe'] = (int(b), int(o, 0), int(c))
    if '--slow' in sys.argv:
        opts['force_slow'] = True
    k = K(stamps=stamps, opts=opts)
    t = k.build()
    out = [x for x in sys.argv[1:] if not x.startswith('--')]
    open(out[0] if out else 'k.s', 'w').write(t)
    if stamps:
        open((out[0] if out else 'k.s') + '.stamps', 'w').write('\n'.join(k.stnames))
    print('instructions:', sum(1 for l in t.split('\n') if l.startswith('    ') and not l.strip().startswith(';')),
          'nops', k.g.nnops, 'waits', k.g.nwaits)
```
